```python
import torch

def _softmax(x, axis=-1):
    return torch.softmax(x, dim=axis)
def _gelu(x):
    return torch.nn.functional.gelu(x, approximate="tanh")
def _silu(x):
    return torch.nn.functional.silu(x)
def _sigmoid(x):
    return torch.sigmoid(x)
def _layernorm(x, axis=-1, eps=1e-5):
    m = x.mean(dim=axis, keepdim=True)
    v = x.var(dim=axis, keepdim=True, unbiased=False)
    return (x - m) / torch.sqrt(v + eps)
def _scatter_add(tgt, idx, src, axis=0):
    return tgt.clone().index_add_(axis, idx, src)
def _segment_sum(src, seg, n):
    out = torch.zeros((n,) + src.shape[1:], dtype=src.dtype)
    return out.index_add_(0, seg, src)
def _pad(x, pw):
    flat = tuple(v for pair in reversed(pw) for v in pair)
    return torch.nn.functional.pad(x, flat)

kernel_name = 'gated_mix__ssm_conv_s4__glu_gated_bilinear__prompt'

def setup_inputs():

    _w = (lambda a: (lambda t: t.to(torch.bfloat16) if t.is_floating_point() else t)(torch.as_tensor(a)))
    def _A_setup():
        B, L, D, N = 1, 2048, 512, 128
        A_re = -(lambda _x: torch.exp(torch.as_tensor(_x)))((lambda *s: torch.randn(*s, dtype=torch.bfloat16) * 3.2)(D, N))
        A_im = torch.pi * (lambda *s: torch.randn(*s, dtype=torch.bfloat16) * 0.05)(D, N)
        B_re = (lambda *s: torch.randn(*s, dtype=torch.bfloat16) * 0.1)(D, N)
        B_im = (lambda *s: torch.randn(*s, dtype=torch.bfloat16) * 0.1)(D, N)
        C_re = (lambda *s: torch.randn(*s, dtype=torch.bfloat16) * 0.1)(D, N)
        C_im = (lambda *s: torch.randn(*s, dtype=torch.bfloat16) * 0.1)(D, N)
        log_dt = (lambda *s: torch.randn(*s, dtype=torch.bfloat16) * 0.05)(D) * 0.5 - 4.0
        Dskip = (lambda *s: torch.randn(*s, dtype=torch.bfloat16) * 0.05)(D)
        return {
            "u": _w((lambda *s: torch.randn(*s, dtype=torch.bfloat16) * 0.05)(B, L, D)),
            "A_re": _w(A_re),
            "A_im": _w(A_im),
            "B_re": _w(B_re),
            "B_im": _w(B_im),
            "C_re": _w(C_re),
            "C_im": _w(C_im),
            "log_dt": _w(log_dt),
            "Dskip": _w(Dskip),
        }
    _A_in = _A_setup()

    def _B_setup():
        B, S, D, F = 1, 2048, 512, 1792
        return {
            "x": _w((lambda *s: torch.randn(*s, dtype=torch.bfloat16) * 0.05)(B, S, D)),
            "w_gate": _w((lambda *s: torch.randn(*s, dtype=torch.bfloat16) * 0.8)(D, F) * (D ** -0.5)),
            "w_up": _w((lambda *s: torch.randn(*s, dtype=torch.bfloat16) * 0.8)(D, F) * (D ** -0.5)),
            "w_down": _w((lambda *s: torch.randn(*s, dtype=torch.bfloat16) * 0.8)(F, D) * (F ** -0.5)),
        }
    _B_in = _B_setup()

    return {
        "A_u": _A_in["u"],
        "A_A_re": _A_in["A_re"],
        "A_A_im": _A_in["A_im"],
        "A_B_re": _A_in["B_re"],
        "A_B_im": _A_in["B_im"],
        "A_C_re": _A_in["C_re"],
        "A_C_im": _A_in["C_im"],
        "A_log_dt": _A_in["log_dt"],
        "A_Dskip": _A_in["Dskip"],
        "B_x": _B_in["x"],
        "B_w_gate": _B_in["w_gate"],
        "B_w_up": _B_in["w_up"],
        "B_w_down": _B_in["w_down"],
        "gate_w": _w((lambda *s: torch.randn(*s, dtype=torch.bfloat16) * 0.05)(512) * 16.0),
    }

def reference(A_u, A_A_re, A_A_im, A_B_re, A_B_im, A_C_re, A_C_im, A_log_dt, A_Dskip, B_x, B_w_gate, B_w_up, B_w_down, gate_w):
    def _A_ref(u, A_re, A_im, B_re, B_im, C_re, C_im, log_dt, Dskip):
        Bsz, L, D = u.shape
        dt = torch.exp(log_dt)[:, None]
        A = A_re + 1j * A_im
        Bc = B_re + 1j * B_im
        Cc = C_re + 1j * C_im
        logdA = dt * A
        dB = dt * Bc
        l = (lambda x, dt: x.to(dt))(torch.arange(L), A_re.dtype)
        P = torch.exp(logdA[:, :, None] * l[None, None, :])
        K = torch.einsum("dn,dnl,dn->dl", Cc, P, dB).real
        L2 = 2 * L
        Kp = _pad(K, ((0, 0), (0, L)))
        up = (lambda x, *d: x.permute(*d))(u, 0, 2, 1)
        up = _pad(up, ((0, 0), (0, 0), (0, L)))
        Kf = (lambda x, axes=(-2,-1): torch.fft.rfft2(x.float(), dim=axes))(Kp[:, None, :], axes=(-2, -1))
        Uf = (lambda x, axes=(-2,-1): torch.fft.rfft2(x.float(), dim=axes))(up[:, :, None, :], axes=(-2, -1))
        Yf = Uf * Kf[None, :, :, :]
        y = (lambda x, s, axes=(-2,-1): torch.fft.irfft2(x, s=s, dim=axes).to(torch.bfloat16))(Yf, (1, L2), axes=(-2, -1))[:, :, 0, :L]
        y = (lambda x, *d: x.permute(*d))(y, 0, 2, 1) + u * Dskip[None, None, :]
        return y

    def _B_ref(x, w_gate, w_up, w_down):
        g = torch.einsum("bsd,df->bsf", x, w_gate)
        u = torch.einsum("bsd,df->bsf", x, w_up)
        h = g * u
        return torch.einsum("bsf,fd->bsd", h, w_down)

    x = A_u
    g = _sigmoid((x * gate_w).sum(-1, keepdims=True))
    a = _A_ref(x, A_A_re, A_A_im, A_B_re, A_B_im, A_C_re, A_C_im, A_log_dt, A_Dskip)
    b = _B_ref(x, B_w_gate, B_w_up, B_w_down)
    return g * a + (1 - g) * b
```

```python
NAME = "gated_mix__ssm_conv_s4__glu_gated_bilinear__prompt_kernel"
HDR = open("gated_mix__ssm_conv_s4__glu_gated_bilinear__prompt.s.ref").read().split("; Override launch geometry")[0]
class Asm:
    def __init__(self):
        self.lines = []
        self.lbl = 0
    def __call__(self, s, *a):
        if a: s = s % a
        for ln in s.split("\n"):
            self.lines.append("    " + ln.strip() if not ln.strip().endswith(":") else ln.strip())
    def label(self, name): self.lines.append(name + ":")
    def newlabel(self, p="L"):
        self.lbl += 1
        return "%s_%d" % (p, self.lbl)
    def text(self): return "\n".join(self.lines) + "\n"
def kernel_text(name, body):
    return ".globl %s\n.p2align 8\n.type %s,@function\n%s:\n%s" % (name, name, name, body)
def descriptor(name, vgpr=256, sgpr=102, accum=256):
    return """.amdhsa_kernel %s
  .amdhsa_next_free_vgpr %d
  .amdhsa_next_free_sgpr %d
  .amdhsa_accum_offset %d
  .amdhsa_group_segment_fixed_size 0
  .amdhsa_kernarg_size 136
  .amdhsa_user_sgpr_count 2
  .amdhsa_user_sgpr_kernarg_segment_ptr 1
  .amdhsa_system_sgpr_workgroup_id_x 1
  .amdhsa_float_denorm_mode_32 3
.end_amdhsa_kernel
""" % (name, vgpr, sgpr, accum)
def single(body, grid=256, block=256, lds=0, vgpr=256, sgpr=102, accum=256):
    return (HDR + "; @launch grid=(%d,1,1) block=(%d,1,1) lds=%d\n" % (grid, block, lds)
        + '.amdgcn_target "amdgcn-amd-amdhsa--gfx950"\n.text\n' + kernel_text(NAME, body)
        + '.section .rodata,"a"\n.p2align 6\n' + descriptor(NAME, vgpr, sgpr, accum))
def multi(kernels):
    s = HDR
    for k in kernels:
        s += "; @launch kernel=%s grid=(%d,1,1) block=(%d,1,1) lds=%d\n" % (k["name"], k["grid"], k["block"], k["lds"])
    s += '.amdgcn_target "amdgcn-amd-amdhsa--gfx950"\n.text\n'
    seen = set()
    for k in kernels:
        if k["name"] in seen: continue
        seen.add(k["name"]); s += kernel_text(k["name"], k["body"])
    s += '.section .rodata,"a"\n'
    seen = set()
    for k in kernels:
        if k["name"] in seen: continue
        seen.add(k["name"]); s += ".p2align 6\n" + descriptor(k["name"], k.get("vgpr", 256), k.get("sgpr", 102), k.get("accum", 256))
    return s
```

```python
import re
TRANS = ("v_exp_f32", "v_log_f32", "v_rcp_f32", "v_rsq_f32", "v_sqrt_f32", "v_sin_f32", "v_cos_f32")
def regs(tok):
    tok = tok.strip()
    if tok.startswith("-"): tok = tok[1:]
    if tok.startswith("|"): tok = tok.strip("|")
    m = re.fullmatch(r"([vsa])(\d+)", tok)
    if m: return {(m.group(1), int(m.group(2)))}
    m = re.fullmatch(r"([vsa])\[(\d+):(\d+)\]", tok)
    if m: return {(m.group(1), i) for i in range(int(m.group(2)), int(m.group(3)) + 1)}
    if tok == "vcc": return {("s", 106), ("s", 107)}
    if tok == "exec": return {("s", 126), ("s", 127)}
    if tok == "m0": return {("s", 124)}
    return set()
class I:
    pass
def parse(line):
    t = line.strip()
    if not t or t.endswith(":") or t.startswith(".") or t.startswith(";"): return None
    t = t.split(";")[0].strip()
    op = t.split()[0]
    rest = t[len(op):].strip()
    ops = []
    depth = 0; cur = ""
    for ch in rest:
        if ch == "[": depth += 1
        if ch == "]": depth -= 1
        if ch == "," and depth == 0: ops.append(cur.strip()); cur = ""
        else: cur += ch
    if cur.strip(): ops.append(cur.strip())
    mods = ""
    if ops:
        last = ops[-1].split(None, 1)
        ops[-1] = last[0]
        if len(last) > 1: mods = last[1]
    i = I(); i.op = op; i.ops = ops; i.mods = mods; i.text = t
    i.w = set(); i.r = set(); i.kind = "other"; i.srcc = set(); i.ab = set(); i.sdata = set()
    base = re.sub(r"_(e32|e64|dpp|sdwa)$", "", op)
    i.base = base
    R = [regs(o) for o in ops]
    if op.startswith("v_mfma"):
        i.kind = "mfma"; i.w = R[0]; i.ab = R[1] | R[2]; i.srcc = R[3]; i.r = i.ab | i.srcc
        i.passes = 8 if "32x32x16" in op else 4
    elif op.startswith("v_"):
        i.kind = "valu"
        i.w = set(R[0])
        for x in R[1:]: i.r |= x
        if base in ("v_swap_b32", "v_permlane32_swap_b32", "v_permlane16_swap_b32"): i.w |= R[1]; i.r |= R[0]
        if base in ("v_fmac_f32", "v_writelane_b32") or op.endswith("_dpp"): i.r |= R[0]
        if base == "v_cndmask_b32" and len(ops) == 3: i.r |= regs("vcc")
        i.trans = base in TRANS
        i.dpp = op.endswith("_dpp")
    elif op.startswith("ds_"):
        i.kind = "ds"
        if op.startswith("ds_read") or "_rtn" in op or op.startswith("ds_bpermute") or op.startswith("ds_swizzle"):
            i.w = R[0]
            for x in R[1:]: i.r |= x
        else:
            for x in R: i.r |= x
        if "addtid" in op: i.r |= regs("m0")
    elif op.startswith("buffer_") or op.startswith("global_"):
        i.kind = "vmem"
        if op in ("buffer_wbl2", "buffer_inv"): pass
        elif "load" in op:
            if re.search(r"\blds\b", mods):
                for x in R: i.r |= x
                i.r |= regs("m0")
            else:
                i.w = R[0]
                for x in R[1:]: i.r |= x
                if "d16" in op: i.r |= R[0]
        else:
            for x in R: i.r |= x
            if op.endswith("x4") or op.endswith("x3"):
                i.sdata = R[0] if op.startswith("buffer_") else R[1]
    elif op.startswith("s_"):
        i.kind = "salu"
        nod = ("s_cmp", "s_waitcnt", "s_barrier", "s_branch", "s_cbranch", "s_nop", "s_setprio", "s_sleep", "s_bitcmp", "s_endpgm", "s_setpc")
        if any(op.startswith(x) for x in nod):
            for x in R: i.r |= x
        else:
            i.w = set(R[0]) if R else set()
            for x in R[1:]: i.r |= x
            if "saveexec" in op: i.w |= regs("exec")
    return i
def need(p, c):
    n = 0
    vw = {x for x in p.w if x[0] in "va"}; sw = {x for x in p.w if x[0] == "s"}
    if p.kind == "valu":
        if c.kind == "mfma" and vw & c.r: n = max(n, 2)
        if c.kind == "valu":
            if p.trans and not c.trans and vw & c.r: n = max(n, 1)
            if c.dpp and vw & c.r: n = max(n, 2)
            if c.base.startswith("v_permlane") and vw & c.r: n = max(n, 2)
            if c.base in ("v_readlane_b32", "v_readfirstlane_b32") and vw & c.r: n = max(n, 1)
            if sw & c.r: n = max(n, 4 if c.base in ("v_readlane_b32", "v_writelane_b32") else 2)
        if c.kind == "vmem" and sw & c.r: n = max(n, 5)
        if c.kind == "salu" and sw & c.r: n = max(n, 2)
        if p.trans and c.kind in ("ds", "vmem", "mfma") and vw & c.r: n = max(n, 2)
    if p.kind == "mfma":
        big = 12 if p.passes == 8 else 8
        if c.kind == "mfma":
            if p.w & c.ab: n = max(n, big)
            if p.w & c.srcc and not (p.w == c.srcc and p.passes == c.passes): n = max(n, 10 if p.passes == 8 else 6)
            if p.w & c.w and not (p.w == c.w and p.passes == c.passes): n = max(n, big)
        elif c.kind in ("valu", "ds", "vmem"):
            if p.w & (c.r | c.w): n = max(n, big)
            if c.kind == "valu" and p.srcc & c.w: n = max(n, 7 if p.passes == 8 else 3)
    if p.kind == "vmem" and p.sdata:
        if p.sdata & c.w: n = max(n, 2 if c.kind in ("valu", "mfma") else 1)
    if p.kind == "salu" and ("s", 124) in p.w and ("s", 124) in c.r and c.kind in ("ds", "vmem"): n = max(n, 1)
    if p.kind == "salu" and (("s", 126) in p.w) and c.kind == "valu" and getattr(c, "dpp", False): n = max(n, 1)
    return n
def fix(lines, verbose=False):
    out = []; hist = []
    added = 0
    for ln in lines:
        i = parse(ln)
        if i is None:
            out.append(ln); continue
        req = 0
        for p, d in hist:
            k = need(p, i)
            if k > d: req = max(req, k - d)
        if req:
            out.append("    s_nop %d" % (req - 1)); added += 1
            if verbose: print("pad %d before: %s" % (req, i.text))
            for h in hist: h[1] += req
        out.append(ln)
        st = 1
        if i.op == "s_nop": st = int(i.ops[0]) + 1
        for h in hist: h[1] += st
        hist.append([i, 0])
        hist = [h for h in hist if h[1] < 14]
        if i.op in ("s_branch", "s_endpgm", "s_setpc_b64"): hist = []
    return out, added
```

```python
import sys, struct
import numpy as np
from asmlib import *
import hazard
outf = sys.argv[1]
opts = dict(x.split("=") for x in sys.argv[2:])
def opt(k, d=0): return int(opts.get(k, d))
TS = opt("ts")
DBG = opt("dbg")
H_OFF, UT_OFF, AT_OFF, WDT_OFF, G_OFF, FL_OFF, FL2_OFF = 0, 0x800000, 0xA00000, 0xC00000, 0xE00000, 0xE10000, 0xE14000
DBG_OFF = 0x1000000
TS_OFF = 0x8000000
PANEL = 112 * 2048
MS = 4608; AUX = 4 * MS; US = 4224; MISC = AUX + 2 * US
XS = 16384; WS_ = 28928; UOFF = 14336 + 128
XB = [27136, 27136 + XS, 27136 + 2 * XS]
WB = [105216, 134144, 76288]
LDS_BYTES = 163072
RB = XB[2]; RCS = 4640; RCH = 4 * RCS
CRED = XB[0]; GRED = WB[0]; ATS = XB[1]
SPIN = 30000
def rng(b, n): return "v[%d:%d]" % (b, b + n - 1)
def f2u(x): return struct.unpack("<I", struct.pack("<f", x))[0]
class VA:
    def __init__(s, start=1): s.n = start; s.hi = start
    def get(s, n=1, al=1):
        s.n = (s.n + al - 1) // al * al
        r = s.n; s.n += n; s.hi = max(s.hi, s.n); assert s.n <= 256, s.n; return r
a = Asm()
L = 0
class Stamps:
    def __init__(s): s.n = 0
    def __call__(s, name=""):
        if TS:
            assert s.n < 15
            a("s_memtime s[%d:%d]" % (70 + 2 * s.n, 71 + 2 * s.n)); s.n += 1
def store_stamps(n):
    if not TS: return
    a("s_waitcnt lgkmcnt(0)")
    a("s_lshl_b32 s3, s2, 3"); a("s_add_u32 s3, s3, s4"); a("s_lshl_b32 s3, s3, 7"); a("s_add_u32 s3, s3, %d" % TS_OFF)
    a("v_cmp_eq_u32 vcc, 0, v0"); a("v_mov_b32 v1, 0x7fffffff"); a("v_cndmask_b32 v1, v1, v0, vcc")
    a("v_mov_b32 v2, s68"); a("v_mov_b32 v3, s69")
    a("buffer_store_dwordx2 v[2:3], v1, s[12:15], s3 offen")
    for i in range(15):
        a("v_mov_b32 v%d, s%d" % (4 + 2 * i, 70 + 2 * min(i, n - 1))); a("v_mov_b32 v%d, s%d" % (5 + 2 * i, 71 + 2 * min(i, n - 1)))
        a("buffer_store_dwordx2 v[%d:%d], v1, s[12:15], s3 offen offset:%d" % (4 + 2 * i, 5 + 2 * i, 8 + 8 * i))
def srd(d, lo, hi, nbytes):
    a("s_mov_b32 s%d, s%d" % (d, lo)); a("s_and_b32 s%d, s%d, 0xffff" % (d + 1, hi))
    a("s_mov_b32 s%d, %d" % (d + 2, nbytes)); a("s_mov_b32 s%d, 0x20000" % (d + 3))
def poll(label, load_txt, vreg, want, cnt="s10"):
    a("s_mov_b32 %s, 0" % cnt)
    a.label(label)
    a(load_txt)
    a("s_waitcnt vmcnt(0)")
    a("v_cmp_ne_u32 vcc, %s, v%d" % (want, vreg))
    a("s_add_u32 %s, %s, 1" % (cnt, cnt))
    a("s_nop 1")
    a("s_cmp_eq_u64 vcc, 0")
    a("s_cbranch_scc1 %s_ok" % label)
    a("s_sleep 2")
    a("s_cmp_lt_u32 %s, %d" % (cnt, SPIN))
    a("s_cbranch_scc1 %s" % label)
    a.label(label + "_ok")

if TS: a("s_memtime s[68:69]")
a("s_cmp_ge_u32 s2, 256"); a("s_cbranch_scc1 Lend")
a("s_load_dwordx16 s[16:31], s[0:1], 0")
a("s_load_dwordx16 s[32:47], s[0:1], 64")
a("s_load_dwordx2 s[48:49], s[0:1], 128")
a("v_lshrrev_b32 v1, 6, v0"); a("v_and_b32 v0, 63, v0")
a("v_readfirstlane_b32 s4, v1")
a("s_and_b32 s10, s2, 7"); a("s_lshr_b32 s11, s2, 3")
a("s_and_b32 s6, s10, 1"); a("s_lshl_b32 s6, s6, 3"); a("s_and_b32 s3, s11, 7"); a("s_add_u32 s6, s6, s3")
a("s_lshr_b32 s7, s10, 1"); a("s_lshl_b32 s7, s7, 2"); a("s_lshr_b32 s3, s11, 3"); a("s_add_u32 s7, s7, s3")
a("s_lshl_b32 s8, s10, 2"); a("s_and_b32 s3, s11, 3"); a("s_add_u32 s8, s8, s3")
a("s_lshr_b32 s9, s11, 2")
a("s_and_b32 s5, s4, 3")
a("s_cmp_lt_u32 s4, 4"); a("s_cbranch_scc1 Lrole_M")
a("s_cmp_ge_u32 s4, 6"); a("s_cbranch_scc1 Lrole_aux")

st = Stamps()
va = VA(1)
T0, T1, T2, T3 = va.get(), va.get(), va.get(), va.get()
vdx = va.get(4); vdw = va.get(7)
a("s_setprio 3")
a("s_mov_b32 s50, 4682")
assert all(((x * 4682) >> 16) == x // 14 for x in range(448))
for i in range(7):
    a("v_add_u32 v%d, %d, v%d" % (T0, 64 * i, L))
    a("v_mul_u32_u24 v%d, s50, v%d" % (T1, T0))
    a("v_lshrrev_b32 v%d, 16, v%d" % (T1, T1))
    a("v_mul_u32_u24 v%d, %d, v%d" % (T1, 3584 - 224, T1))
    a("v_lshl_add_u32 v%d, v%d, 4, v%d" % (T1, T0, T1))
    a("v_subrev_u32 v%d, %d, v%d" % (vdw + i, 1024 * (i % 4), T1))
a("v_lshrrev_b32 v%d, 3, v%d" % (T0, L))
a("v_lshrrev_b32 v%d, 4, v%d" % (T1, L)); a("v_xor_b32 v%d, v%d, v%d" % (T1, T1, L)); a("v_and_b32 v%d, 7, v%d" % (T1, T1))
a("v_lshlrev_b32 v%d, 4, v%d" % (T1, T1)); a("v_lshl_add_u32 v%d, v%d, 10, v%d" % (vdx, T0, T1))
a("v_xor_b32 v%d, 64, v%d" % (T2, vdx))
a("v_add_u32 v%d, %d, v%d" % (vdx + 1, 7168, T2)); a("v_add_u32 v%d, %d, v%d" % (vdx + 2, 2 * 7168, vdx)); a("v_add_u32 v%d, %d, v%d" % (vdx + 3, 3 * 7168, T2))
a("s_and_b32 s51, s4, 1")
a("s_lshl_b32 s60, s6, 17"); a("s_lshl_b32 s3, s51, 16"); a("s_add_u32 s60, s60, s3")
a("s_mul_i32 s61, s7, 224")
a("s_lshl_b32 s62, s51, 13"); a("s_mul_i32 s63, s51, %d" % UOFF)
a("s_waitcnt lgkmcnt(0)")
a("s_cmp_eq_u32 s51, 0")
a("s_cselect_b32 s56, s36, s38"); a("s_cselect_b32 s57, s37, s39"); a("s_and_b32 s57, s57, 0xffff")
a("s_mov_b32 s58, %d" % (512 * 1792 * 2)); a("s_mov_b32 s59, 0x20000")
srd(52, 16, 17, 0x200000)
def dma_stage(s):
    slot = s % 3
    for half in range(2):
        a("s_add_u32 s64, s61, %d" % ((s * 64 + half * 32) * 3584))
        a("s_add_u32 m0, s63, %d" % (WB[slot] + half * 7168))
        for i in range(4): a("buffer_load_dwordx4 v%d, s[56:59], s64 offen offset:%d lds" % (vdw + i, 1024 * i))
        a("s_add_u32 m0, s63, %d" % (WB[slot] + half * 7168 + 4096))
        for i in range(4, 7): a("buffer_load_dwordx4 v%d, s[56:59], s64 offen offset:%d lds" % (vdw + i, 1024 * (i - 4)))
        a("s_add_u32 s65, s60, %d" % (s * 128 + half * 32768))
        a("s_add_u32 m0, s62, %d" % (XB[slot] + half * 4096))
        for i in range(4): a("buffer_load_dwordx4 v%d, s[52:55], s65 offen offset:%d lds" % (vdx + i, 1024 * i))
st()
dma_stage(0); dma_stage(1)
srd(12, 48, 49, 0x10000000)
a("s_waitcnt vmcnt(22)"); st(); a("s_barrier")
dma_stage(2)
for s in range(0, 6):
    a("s_waitcnt vmcnt(22)");
    if s in (0, 2, 4): st()
    a("s_barrier")
    if s + 3 < 8: dma_stage(s + 3)
a("s_branch Lg2_common")
ld_st = st.n

a.label("Lrole_aux")
st = Stamps()
va = VA(1)
T0, T1, T2, T3 = va.get(), va.get(), va.get(), va.get()
vrow = va.get(); vl16 = va.get(); vtrA = va.get(); vtrB = va.get(); vwr = va.get(); vuo = va.get(); vsel = va.get()
vtab = va.get(12, 4); vadr = va.get(24)
vx = va.get(16, 4); vwd = va.get(16, 4); vg = va.get(16, 4); vgw = va.get(4, 4); vgwu = va.get(8, 2); vt8 = va.get(8, 2); vsum = va.get(4, 4)
vV = va.get(24)
vE = 192
assert va.n <= 192
a("s_and_b32 s51, s4, 1")
a("v_lshlrev_b32 v%d, 4, v%d" % (vl16, L))
a("v_lshrrev_b32 v%d, 3, v%d" % (T0, L)); a("v_and_b32 v%d, 7, v%d" % (T1, L)); a("v_lshlrev_b32 v%d, 4, v%d" % (T1, T1))
a("v_lshl_add_u32 v%d, v%d, 10, v%d" % (vrow, T0, T1))
a("s_getpc_b64 s[60:61]")
a.label("Lpc0")
a("s_add_u32 s60, s60, Ltable-Lpc0"); a("s_addc_u32 s61, s61, 0"); a("s_and_b32 s61, s61, 0xffff")
a("s_mov_b32 s62, 3072"); a("s_mov_b32 s63, 0x20000")
for i in range(3): a("buffer_load_dwordx4 %s, v%d, s[60:63], 0 offen offset:%d" % (rng(vtab + 4 * i, 4), vl16, 1024 * i))
a("s_lshl_b32 s64, s6, 7"); a("s_and_b32 s3, s7, 1"); a("s_lshl_b32 s3, s3, 6"); a("s_add_u32 s64, s64, s3")
a("s_lshl_b32 s3, s51, 5"); a("s_add_u32 s64, s64, s3")
a("s_lshr_b32 s65, s7, 1")
a("s_lshl_b32 s66, s64, 10"); a("s_lshl_b32 s3, s65, 7"); a("s_add_u32 s66, s66, s3")
a("s_lshl_b32 s67, s2, 1"); a("s_add_u32 s67, s67, s51")
a("s_and_b32 s50, s67, 7"); a("s_lshr_b32 s67, s67, 3")
a("s_waitcnt lgkmcnt(0)")
srd(52, 16, 17, 0x200000)
srd(56, 40, 41, 1792 * 512 * 2)
for i in range(4):
    a("buffer_load_dwordx4 %s, v%d, s[52:55], s66 offen" % (rng(vx + 4 * i, 4), vrow))
    if i < 3: a("s_add_u32 s66, s66, 8192")
a("s_min_u32 s66, s67, 55"); a("s_lshl_b32 s66, s66, 15"); a("s_lshl_b32 s3, s50, 7"); a("s_add_u32 s66, s66, s3")
for i in range(4):
    a("buffer_load_dwordx4 %s, v%d, s[56:59], s66 offen" % (rng(vwd + 4 * i, 4), vrow))
    if i < 3: a("s_add_u32 s66, s66, 8192")
a("s_lshl_b32 s11, s6, 7"); a("s_lshl_b32 s3, s7, 3"); a("s_add_u32 s11, s11, s3"); a("s_lshl_b32 s3, s51, 2"); a("s_add_u32 s11, s11, s3")
a("s_lshl_b32 s66, s11, 10")
for i in range(4): a("buffer_load_dwordx4 %s, v%d, s[52:55], s66 offen offset:%d" % (rng(vg + 4 * i, 4), vl16, 1024 * i))
srd(56, 42, 43, 1024)
a("buffer_load_dwordx4 %s, v%d, s[56:59], 0 offen" % (rng(vgw, 4), vl16))
srd(12, 48, 49, 0x10000000)
a("s_mul_i32 s66, s51, %d" % US); a("s_add_u32 s66, s66, %d" % AUX)
a("v_add_u32 v%d, s66, v%d" % (vwr, vl16))
a("v_bfe_u32 v%d, v%d, 2, 2" % (T0, L)); a("v_and_b32 v%d, 3, v%d" % (T1, L)); a("v_lshlrev_b32 v%d, 3, v%d" % (T1, T1))
a("v_lshl_add_u32 v%d, v%d, 7, v%d" % (T0, T0, T1)); a("v_add_u32 v%d, s66, v%d" % (T0, T0))
a("v_lshrrev_b32 v%d, 4, v%d" % (T1, L))
a("v_lshl_add_u32 v%d, v%d, 10, v%d" % (vtrA, T1, T0))
a("v_lshrrev_b32 v%d, 5, v%d" % (T2, L)); a("v_lshl_add_u32 v%d, v%d, 9, v%d" % (vtrB, T2, T0))
a("v_and_b32 v%d, 1, v%d" % (T2, T1)); a("v_lshl_add_u32 v%d, v%d, 5, v%d" % (vtrB, T2, vtrB))
a("v_and_b32 v%d, 15, v%d" % (T2, L)); a("v_lshlrev_b32 v%d, 12, v%d" % (T2, T2)); a("v_lshl_add_u32 v%d, v%d, 4, v%d" % (vuo, T1, T2))
a("v_mov_b32 v%d, 0" % T0); a("v_lshlrev_b32 v%d, 2, v%d" % (T1, L)); a("ds_write_b32 v%d, v%d offset:%d" % (T1, T0, MISC))
st()
a("s_waitcnt vmcnt(9)")
st()
for i in range(4): a("ds_write_b128 v%d, %s offset:%d" % (vwr, rng(vx + 4 * i, 4), 1024 * i))
for i in range(4):
    a("ds_read_b64_tr_b16 %s, v%d offset:%d" % (rng(vV + 0, 0 + 2) if False else rng(vE + 4 * i, 2), vtrA, 32 * i))
    a("ds_read_b64_tr_b16 %s, v%d offset:%d" % (rng(vE + 4 * i + 2, 2), vtrA, 32 * i + 512))
a("s_waitcnt vmcnt(5)")
for i in range(4): a("ds_write_b128 v%d, %s offset:%d" % (vwr, rng(vwd + 4 * i, 4), 1024 * i))
for e in range(2):
    for dt in range(2):
        r = vE + 16 + 4 * (2 * e + dt)
        a("ds_read_b64_tr_b16 %s, v%d offset:%d" % (rng(r, 2), vtrB, 2048 * e + 64 * dt))
        a("ds_read_b64_tr_b16 %s, v%d offset:%d" % (rng(r + 2, 2), vtrB, 2048 * e + 64 * dt + 1024))
a("s_lshl_b32 s66, s65, 18"); a("s_lshl_b32 s3, s64, 1"); a("s_add_u32 s66, s66, s3"); a("s_add_u32 s66, s66, %d" % UT_OFF)
a("s_waitcnt lgkmcnt(12)")
for i in range(4):
    a("buffer_store_dwordx4 %s, v%d, s[12:15], s66 offen sc1" % (rng(vE + 4 * i, 4), vuo))
    if i < 3: a("s_add_u32 s66, s66, 0x10000")
a("s_mul_i32 s66, s50, %d" % PANEL); a("s_lshl_b32 s3, s67, 12"); a("s_add_u32 s66, s66, s3"); a("s_add_u32 s66, s66, %d" % WDT_OFF)
a("s_waitcnt lgkmcnt(0)")
a("s_cmp_ge_u32 s2, 224"); a("s_cbranch_scc1 Laux_nowd")
for i in range(4): a("buffer_store_dwordx4 %s, v%d, s[12:15], s66 offen offset:%d sc1" % (rng(vE + 16 + 4 * i, 4), vl16, 1024 * i))
a.label("Laux_nowd")
st()
a("s_barrier")
a("s_waitcnt vmcnt(4)")
for i in range(4):
    a("v_lshlrev_b32 v%d, 16, v%d" % (vgwu + 2 * i, vgw + i)); a("v_and_b32 v%d, 0xffff0000, v%d" % (vgwu + 2 * i + 1, vgw + i))
for r in range(4):
    for i in range(4):
        a("v_lshlrev_b32 v%d, 16, v%d" % (vt8 + 2 * i, vg + 4 * r + i)); a("v_and_b32 v%d, 0xffff0000, v%d" % (vt8 + 2 * i + 1, vg + 4 * r + i))
    for i in range(4): a("v_pk_mul_f32 %s, %s, %s" % (rng(vt8 + 2 * i, 2), rng(vt8 + 2 * i, 2), rng(vgwu + 2 * i, 2)))
    for i in range(8): a("v_cvt_pk_bf16_f32 v%d, 0, v%d" % (vt8 + i, vt8 + i))
    a("v_pk_add_f32 %s, %s, %s" % (rng(vt8, 2), rng(vt8, 2), rng(vt8 + 2, 2)))
    a("v_pk_add_f32 %s, %s, %s" % (rng(vt8 + 4, 2), rng(vt8 + 4, 2), rng(vt8 + 6, 2)))
    a("v_pk_add_f32 %s, %s, %s" % (rng(vt8, 2), rng(vt8, 2), rng(vt8 + 4, 2)))
    a("v_add_f32 v%d, v%d, v%d" % (vsum + r, vt8, vt8 + 1))
for m in ("quad_perm:[1,0,3,2] row_mask:0xf bank_mask:0xf", "quad_perm:[2,3,0,1] row_mask:0xf bank_mask:0xf",
          "row_half_mirror row_mask:0xf bank_mask:0xf", "row_mirror row_mask:0xf bank_mask:0xf",
          "row_bcast:15 row_mask:0xa bank_mask:0xf", "row_bcast:31 row_mask:0xc bank_mask:0xf"):
    for r in range(4): a("v_add_f32_dpp v%d, v%d, v%d %s" % (vsum + r, vsum + r, vsum + r, m))
for r in range(4): a("v_cvt_pk_bf16_f32 v%d, 0, v%d" % (vsum + r, vsum + r))
for r in range(4): a("v_mul_f32 v%d, 0x%x, v%d" % (vsum + r, f2u(-1.4426950408889634), vsum + r))
for r in range(4): a("v_exp_f32 v%d, v%d" % (vsum + r, vsum + r))
for r in range(4): a("v_add_f32 v%d, 1.0, v%d" % (vsum + r, vsum + r))
for r in range(4): a("v_rcp_f32 v%d, v%d" % (vsum + r, vsum + r))
for r in range(4): a("v_cvt_pk_bf16_f32 v%d, 0, v%d" % (vsum + r, vsum + r))
a("v_cmp_eq_u32 vcc, 63, v%d" % L); a("v_mov_b32 v%d, 0x7fffffff" % T0); a("v_cndmask_b32 v%d, v%d, 0, vcc" % (vsel, T0))
a("s_lshl_b32 s66, s11, 2"); a("s_add_u32 s66, s66, %d" % G_OFF)
a("buffer_store_dwordx4 %s, v%d, s[12:15], s66 offen sc1" % (rng(vsum, 4), vsel))
st()
a("s_barrier")
a("s_mul_i32 s66, s51, %d" % (2 * MS))
a("v_add_u32 v%d, s66, v%d" % (T3, vl16))
for i in range(3):
    a("ds_read_b128 %s, v%d offset:%d" % (rng(vx + 4 * i, 4), T3, 1024 * i))
    a("ds_read_b128 %s, v%d offset:%d" % (rng(vwd + 4 * i, 4), T3, 1024 * i + MS))
a("s_mul_i32 s3, s66, 0x10001")
for i in range(12): a("v_add_u32 v%d, s3, v%d" % (vtab + i, vtab + i))
for i in range(12):
    a("v_and_b32 v%d, 0xffff, v%d" % (vadr + 2 * i, vtab + i)); a("v_lshrrev_b32 v%d, 16, v%d" % (vadr + 2 * i + 1, vtab + i))
a("s_waitcnt lgkmcnt(0)")
for i in range(6): a("v_pk_add_f32 %s, %s, %s" % (rng(vx + 2 * i, 2), rng(vx + 2 * i, 2), rng(vwd + 2 * i, 2)))
for i in range(4): a("v_mov_b32 v%d, 0" % (vx + 12 + i))
for i in range(4): a("ds_write_b128 v%d, %s offset:%d" % (T3, rng(vx + 4 * i, 4), 1024 * i))
for i in range(24): a("ds_read_b32 v%d, v%d" % (vV + i, vadr + i))
a("s_waitcnt vmcnt(0)")
a("v_mov_b32 v%d, %d" % (T0, MISC)); a("v_mov_b32 v%d, 1" % T1)
a("s_mov_b64 exec, 1")
a("ds_add_rtn_u32 v%d, v%d, v%d" % (T2, T0, T1))
a("s_mov_b64 exec, -1")
a("s_waitcnt lgkmcnt(0)")
a("v_readfirstlane_b32 s3, v%d" % T2)
srd(56, 46, 47, 256)
a("s_cmp_eq_u32 s3, 1"); a("s_cbranch_scc0 Laux_noflag")
a("buffer_store_byte v%d, v%d, s[56:59], s2 offen sc1" % (T1, vsel))
a.label("Laux_noflag")
st()
a("s_barrier")
def vidx(r, z):
    if r == 0: return z + 3
    if r == 1: return 11 + {-3: 0, -2: 1, -1: 2, 0: 2, 1: 2, 2: 2, 3: 3, 4: 3, 5: 3, 6: 4, 7: 4}[z]
    b = 16 + 4 * (r - 2)
    return b + (0 if z == -3 else 1 if z <= 3 else 2 if z == 4 else 3)
GZ = [(0, z) for z in range(-3, 8)] + [(1, z) for z in (-3, -2, 0, 4, 6)] + [(r, z) for r in (2, 3) for z in (-3, 0, 4, 5)]
assert len(GZ) == 24
for r in range(4):
    for c in range(4):
        for k in range(4):
            z = 4 + c - 2 * k
            a("v_cvt_pk_bf16_f32 v%d, v%d, v%d" % (vE + 16 * r + 4 * c + k, vV + vidx(r, z), vV + vidx(r, z - 1)))
a("s_barrier")
a("s_barrier")
a("v_lshlrev_b32 v%d, 2, v%d" % (T1, L))
a("s_mov_b32 s11, 0x01010101")
poll("Lp_f1", "buffer_load_dword v%d, v%d, s[56:59], 0 offen sc1" % (T0, T1), T0, "s11")
st()
a("s_lshl_b32 s66, s2, 1"); a("s_add_u32 s66, s66, s51"); a("s_lshl_b32 s66, s66, 12"); a("s_add_u32 s66, s66, %d" % UT_OFF)
for i in range(4): a("buffer_load_dwordx4 %s, v%d, s[12:15], s66 offen offset:%d sc1" % (rng(vx + 4 * i, 4), vl16, 1024 * i))
a("s_barrier")
for i in range(4): a("v_mov_b32 v%d, 0" % (vwd + i))
a("ds_write_b128 v%d, %s" % (vwr, rng(vwd, 4)))
a("s_mul_i32 s66, s51, %d" % RCH); a("s_add_u32 s66, s66, %d" % (RB + 1008))
a("v_sub_u32 v%d, s66, v%d" % (T3, vl16))
a("v_and_b32 v%d, 31, v%d" % (T0, L)); a("v_lshrrev_b32 v%d, 5, v%d" % (T1, L)); a("v_mul_u32_u24 v%d, %d, v%d" % (T1, RCS, T1))
a("v_lshl_add_u32 v%d, v%d, 4, v%d" % (T0, T0, T1)); a("s_add_u32 s66, s66, %d" % (4096 - 1008)); a("v_add_u32 v%d, s66, v%d" % (T2, T0))
a("s_waitcnt vmcnt(0)")
for i in range(4): a("ds_write_b128 v%d, %s offset:%d" % (vwr, rng(vx + 4 * i, 4), 128 + 1024 * i))
st()
a("s_barrier")
for r in range(4):
    for c in range(4): a("ds_write_b128 v%d, %s offset:%d" % (T3, rng(vE + 16 * r + 4 * c, 4), c * RCS + (3 - r) * 1024))
a("ds_write_b128 v%d, %s" % (T2, rng(vwd, 4)))
a("ds_write_b128 v%d, %s offset:%d" % (T2, rng(vwd, 4), 2 * RCS))
a("s_waitcnt lgkmcnt(0)")
while st.n < ld_st: st()
aux_st = st.n

a.label("Lg2_common")
a("s_nop 4")
st.n = max(ld_st, aux_st)
va = VA(1)
voWa, voWb, voHa, voHb, vfl, vfo, vgate = [va.get() for _ in range(7)]
POOL0 = 8; NSLOT = 46; ACC = 192
assert POOL0 + 4 * NSLOT == ACC
a("s_setprio 0")
a("s_and_b32 s50, s5, 1"); a("s_lshl_b32 s50, s50, 10")
a("s_lshr_b32 s51, s5, 1"); a("s_lshl_b32 s51, s51, 10")
a("v_lshlrev_b32 v%d, 4, v%d" % (vfl, L))
a("v_add_u32 v%d, s50, v%d" % (voWa, vfl)); a("v_xor_b32 v%d, 0x400, v%d" % (voWb, voWa))
a("v_add_u32 v%d, s51, v%d" % (voHa, vfl)); a("v_xor_b32 v%d, 0x400, v%d" % (voHb, voHa))
a("s_mul_i32 s3, s5, %d" % (28 * 2048))
a("s_mul_i32 s60, s9, %d" % PANEL); a("s_add_u32 s60, s60, s3"); a("s_add_u32 s60, s60, %d" % WDT_OFF)
a("s_mul_i32 s61, s8, %d" % PANEL); a("s_add_u32 s61, s61, s3")
free = list(range(NSLOT))
slot_of = {}
vq = []
soff = {"W": None, "H": None}
def g2_load(kind, k, ab):
    sl = free.pop(0); slot_of[(kind, k, ab)] = sl
    sreg = "s62" if kind == "W" else "s63"
    if soff[kind] != k >> 1:
        a("s_add_u32 %s, %s, %d" % (sreg, "s60" if kind == "W" else "s61", 4096 * (k >> 1))); soff[kind] = k >> 1
    vo = {("W", 0): voWa, ("W", 1): voWb, ("H", 0): voHa, ("H", 1): voHb}[(kind, ab)]
    a("buffer_load_dwordx4 %s, v%d, s[12:15], %s offen offset:%d sc1" % (rng(POOL0 + 4 * sl, 4), vo, sreg, 2048 * (k & 1)))
    vq.append((kind, k, ab))
def g2_wait(tags):
    global vq
    last = -1
    for i, t in enumerate(vq):
        if t in tags: last = i
    if last >= 0:
        a("s_waitcnt vmcnt(%d)" % (len(vq) - 1 - last)); vq = vq[last + 1:]
NPRE = opt("npre", 18); N1 = opt("n1", 6)
for k in range(N1): g2_load("W", k, 0); g2_load("W", k, 1)
a("s_waitcnt vmcnt(%d)" % (2 * N1)); st(); a("s_barrier")
for k in range(N1, NPRE): g2_load("W", k, 0); g2_load("W", k, 1)
a("s_lshl_b32 s64, s8, 6"); a("s_lshr_b32 s3, s51, 5"); a("s_add_u32 s64, s64, s3")
a("s_lshl_b32 s65, s9, 6"); a("s_lshr_b32 s3, s50, 5"); a("s_add_u32 s65, s65, s3")
a("v_and_b32 v%d, 31, v%d" % (vfo, L)); a("v_lshlrev_b32 v%d, 2, v%d" % (vfo, vfo))
a("s_lshl_b32 s3, s64, 2"); a("s_add_u32 s3, s3, %d" % G_OFF)
a("buffer_load_dword v%d, v%d, s[12:15], s3 offen sc1" % (vgate, vfo)); vq.append("gate")
a("v_and_b32 v%d, 7, v%d" % (vfo, L)); a("v_lshlrev_b32 v%d, 2, v%d" % (vfo, vfo))
a("s_lshl_b32 s66, s8, 2"); a("s_add_u32 s66, s66, s5"); a("s_lshl_b32 s66, s66, 7"); a("s_add_u32 s66, s66, %d" % FL_OFF)
st(); a("s_barrier")
poll("Lp_h", "buffer_load_dword v%d, v%d, s[12:15], s66 offen sc1" % (vfl, vfo), vfl, "1")
vq = []
st()
needq = []
for k in range(28):
    needq += [("H", k, 0), ("H", k, 1)]
    if k >= NPRE: needq += [("W", k, 0), ("W", k, 1)]
KFLAG, KCHK = opt("kflag", 17), opt("kchk", 22)
reserve = 0
at_slots = None
def refill():
    while needq and len(free) > reserve and len(vq) < 60: g2_load(*needq.pop(0))
refill()
a("v_lshlrev_b32 v%d, 2, v%d" % (vfo, L))
a("s_lshl_b32 s67, s9, 1"); a("s_lshr_b32 s3, s8, 4"); a("s_add_u32 s67, s67, s3"); a("s_lshl_b32 s67, s67, 8"); a("s_add_u32 s67, s67, %d" % FL2_OFF)
for k in range(28):
    tags = {("W", k, 0), ("W", k, 1), ("H", k, 0), ("H", k, 1)}
    g2_wait(tags)
    R_ = lambda t: rng(POOL0 + 4 * slot_of[t], 4)
    for lam in range(4):
        hb, wb = lam >> 1, lam & 1
        c = rng(ACC + 16 * lam, 16) if k else "0"
        a("v_mfma_f32_32x32x16_bf16 %s, %s, %s, %s" % (rng(ACC + 16 * lam, 16), R_(("W", k, wb)), R_(("H", k, hb)), c))
    for t in sorted(tags): free.append(slot_of[t])
    if k == KFLAG:
        a("buffer_load_dword v%d, v%d, s[12:15], s67 offen sc1" % (vfl, vfo)); vq.append("aflag")
    refill()
    if k == KCHK:
        assert not needq
        g2_wait({"aflag"})
        a("v_cmp_ne_u32 vcc, 1, v%d" % vfl); a("s_nop 1"); a("s_cmp_eq_u64 vcc, 0"); a("s_cbranch_scc1 Lp_a_ok")
        poll("Lp_a", "buffer_load_dword v%d, v%d, s[12:15], s67 offen sc1" % (vfl, vfo), vfl, "1")
        free.sort()
        at_slots = [free.pop(0) for _ in range(10)]
        A0, A1 = POOL0 + 4 * at_slots[0], POOL0 + 4 * at_slots[1]
        tt = POOL0 + 4 * at_slots[2]
        a("v_lshrrev_b32 v%d, 2, v%d" % (tt, L)); a("v_lshlrev_b32 v%d, 12, v%d" % (tt, tt)); a("v_and_b32 v%d, 3, v%d" % (tt + 1, L))
        a("v_lshl_add_u32 v%d, v%d, 4, v%d" % (tt, tt + 1, tt))
        a("s_lshl_b32 s62, s65, 12"); a("s_lshl_b32 s3, s64, 1"); a("s_add_u32 s62, s62, s3"); a("s_add_u32 s62, s62, %d" % AT_OFF); a("s_add_u32 s63, s62, 0x10000")
        a("buffer_load_dwordx4 %s, v%d, s[12:15], s62 offen sc1" % (rng(A0, 4), tt)); vq.append("a0")
        a("buffer_load_dwordx4 %s, v%d, s[12:15], s63 offen sc1" % (rng(A1, 4), tt)); vq.append("a1")
st()
A0, A1 = POOL0 + 4 * at_slots[0], POOL0 + 4 * at_slots[1]
tt = POOL0 + 4 * at_slots[2]; t2 = POOL0 + 4 * at_slots[3]
used = set(at_slots[:4])
clean = [s for s in range(NSLOT) if s not in used]
def cq(): return POOL0 + 4 * clean.pop(0)
P = [[cq() for q in range(4)] for s in range(3)]
AQ = [cq(), cq()]
GA = [cq() for q in range(4)]
ad = cq(); ad2 = cq()
a("v_lshlrev_b32 v%d, 4, v%d" % (vfl, L))
for lam in (1, 2, 3):
    a("s_xor_b32 s3, s5, %d" % lam); a("s_mul_i32 s3, s3, %d" % (3 * 4096)); a("s_add_u32 s3, s3, %d" % (GRED + (lam - 1) * 4096))
    a("v_add_u32 v%d, s3, v%d" % (ad + lam, vfl))
a("s_mul_i32 s3, s5, %d" % (3 * 4096)); a("s_add_u32 s3, s3, %d" % GRED); a("v_add_u32 v%d, s3, v%d" % (ad, vfl))
for lam in (1, 2, 3):
    for q in range(4): a("ds_write_b128 v%d, %s offset:%d" % (ad + lam, rng(ACC + 16 * lam + 4 * q, 4), 1024 * q))
a("s_lshl_b32 s3, s5, 11"); a("s_add_u32 s3, s3, %d" % ATS)
a("v_add_u32 v%d, s3, v%d" % (ad2, vfl))
a("v_bfe_u32 v%d, v%d, 2, 2" % (tt, L)); a("v_lshrrev_b32 v%d, 5, v%d" % (tt + 1, L)); a("v_lshl_add_u32 v%d, v%d, 2, v%d" % (tt, tt + 1, tt))
a("v_lshlrev_b32 v%d, 6, v%d" % (tt, tt)); a("v_bfe_u32 v%d, v%d, 4, 1" % (tt + 2, L)); a("v_lshl_add_u32 v%d, v%d, 5, v%d" % (tt, tt + 2, tt))
a("v_and_b32 v%d, 3, v%d" % (tt + 2, L)); a("v_lshl_add_u32 v%d, v%d, 3, v%d" % (tt, tt + 2, tt)); a("v_add_u32 v%d, s3, v%d" % (ad2 + 1, tt))
a("s_waitcnt vmcnt(0)")
a("ds_write_b128 v%d, %s" % (ad2, rng(A0, 4))); a("ds_write_b128 v%d, %s offset:1024" % (ad2, rng(A1, 4)))
for i2 in range(4): a("ds_read_b64_tr_b16 %s, v%d offset:%d" % (rng(AQ[i2 >> 1] + 2 * (i2 & 1), 2), ad2 + 1, 512 * i2))
a("v_and_b32 v%d, 31, v%d" % (tt, L)); a("v_lshlrev_b32 v%d, 10, v%d" % (tt, tt)); a("v_lshl_add_u32 v%d, v%d, 4, v%d" % (ad2 + 2, tt + 1, tt))
a("s_lshl_b32 s62, s64, 10"); a("s_lshl_b32 s3, s65, 1"); a("s_add_u32 s62, s62, s3")
srd(52, 44, 45, 0x200000)
omg = t2; g2 = t2 + 2
a("v_sub_f32 v%d, 1.0, v%d" % (omg, vgate)); a("v_cvt_pk_bf16_f32 v%d, 0, v%d" % (omg, omg)); a("v_mov_b32 v%d, v%d" % (omg + 1, omg))
a("v_mov_b32 v%d, v%d" % (g2, vgate)); a("v_mov_b32 v%d, v%d" % (g2 + 1, vgate))
a("s_waitcnt lgkmcnt(0)")
st()
a("s_barrier")
for q in range(4):
    for s in range(3): a("ds_read_b128 %s, v%d offset:%d" % (rng(P[s][q], 4), ad, s * 4096 + 1024 * q))
for q in range(4):
    src = AQ[q >> 1] + 2 * (q & 1)
    for h in range(2):
        a("v_lshlrev_b32 v%d, 16, v%d" % (GA[q] + 2 * h, src + h)); a("v_and_b32 v%d, 0xffff0000, v%d" % (GA[q] + 2 * h + 1, src + h))
    for h in range(2): a("v_pk_mul_f32 %s, %s, %s" % (rng(GA[q] + 2 * h, 2), rng(GA[q] + 2 * h, 2), rng(g2, 2)))
    for i in range(4): a("v_cvt_pk_bf16_f32 v%d, 0, v%d" % (GA[q] + i, GA[q] + i))
OUTQ = [P[0][0], P[0][2]]
for q in range(4):
    a("s_waitcnt lgkmcnt(%d)" % (9 - 3 * q))
    b = ACC + 4 * q
    for h in range(2):
        a("v_pk_add_f32 %s, %s, %s" % (rng(b + 2 * h, 2), rng(b + 2 * h, 2), rng(P[0][q] + 2 * h, 2)))
        a("v_pk_add_f32 %s, %s, %s" % (rng(P[1][q] + 2 * h, 2), rng(P[1][q] + 2 * h, 2), rng(P[2][q] + 2 * h, 2)))
    for h in range(2): a("v_pk_add_f32 %s, %s, %s" % (rng(b + 2 * h, 2), rng(b + 2 * h, 2), rng(P[1][q] + 2 * h, 2)))
    for i in range(4): a("v_cvt_pk_bf16_f32 v%d, 0, v%d" % (b + i, b + i))
    for h in range(2): a("v_pk_mul_f32 %s, %s, %s" % (rng(b + 2 * h, 2), rng(b + 2 * h, 2), rng(omg, 2)))
    for i in range(4): a("v_cvt_pk_bf16_f32 v%d, 0, v%d" % (b + i, b + i))
    for h in range(2): a("v_pk_add_f32 %s, %s, %s" % (rng(b + 2 * h, 2), rng(b + 2 * h, 2), rng(GA[q] + 2 * h, 2)))
    o = OUTQ[q >> 1] + 2 * (q & 1)
    for h in range(2): a("v_cvt_pk_bf16_f32 v%d, v%d, v%d" % (o + h, b + 2 * h, b + 2 * h + 1))
    if q & 1:
        o = OUTQ[q >> 1]
        a("v_permlane32_swap_b32 v%d, v%d" % (o, o + 2)); a("v_permlane32_swap_b32 v%d, v%d" % (o + 1, o + 3))
        a("buffer_store_dwordx4 %s, v%d, s[52:55], s62 offen offset:%d" % (rng(o, 4), ad2 + 2, 32 * (q >> 1)))
st()
if TS:
    a("s_waitcnt vmcnt(0)"); st()
store_stamps(st.n)
a("s_endpgm")

a.label("Lrole_M")
st = Stamps()
va = VA(1)
T0, T1, T2, T3 = va.get(), va.get(), va.get(), va.get()
vxa = va.get(8); vwa = va.get(6); vl16 = va.get(); vone = va.get(); vsel0 = va.get()
vfr = va.get(48, 4)
vacc = va.get(112, 4)
kv = VA(vfr)
pAre, pAim, pBre, pBim, pCre, pCim = [kv.get() for _ in range(6)]
for r in (pAre, pAim, pBre, pBim, pCre, pCim): a("v_mov_b32 v%d, 0" % r)
a("s_lshl_b32 s3, s2, 9"); a("s_lshl_b32 s10, s5, 7"); a("s_add_u32 s3, s3, s10")
a("v_lshl_add_u32 v%d, v%d, 1, s3" % (T0, L))
a("s_lshl_b32 s11, s2, 2")
a("s_waitcnt lgkmcnt(0)")
for r, s in ((pAre, 18), (pAim, 20), (pBre, 22), (pBim, 24), (pCre, 26), (pCim, 28)):
    a("global_load_short_d16_hi v%d, v%d, s[%d:%d]" % (r, T0, s, s + 1))
a("s_load_dword s50, s[30:31], s11")
a("s_load_dword s51, s[32:33], s11")
srd(12, 48, 49, 0x10000000)
a("s_lshl_b32 s52, s6, 1"); a("s_lshr_b32 s3, s5, 1"); a("s_add_u32 s54, s52, s3")
a("s_lshl_b32 s52, s54, 2"); a("s_lshr_b32 s3, s7, 2"); a("s_add_u32 s52, s52, s3"); a("s_lshl_b32 s52, s52, 7")
a("s_and_b32 s3, s7, 3"); a("s_lshl_b32 s3, s3, 3"); a("s_add_u32 s52, s52, s3")
a("s_and_b32 s55, s5, 1"); a("s_lshl_b32 s3, s55, 2"); a("s_add_u32 s52, s52, s3"); a("s_add_u32 s52, s52, %d" % FL_OFF)
a("s_lshl_b32 s56, s2, 1"); a("s_lshr_b32 s3, s5, 1"); a("s_add_u32 s56, s56, s3")
a("s_lshr_b32 s53, s56, 6"); a("s_lshl_b32 s53, s53, 1"); a("s_add_u32 s53, s53, s55"); a("s_lshl_b32 s53, s53, 8")
a("s_and_b32 s3, s56, 63"); a("s_lshl_b32 s3, s3, 2"); a("s_add_u32 s53, s53, s3"); a("s_add_u32 s53, s53, %d" % FL2_OFF)
a("v_cmp_eq_u32 vcc, 0, v%d" % L); a("v_mov_b32 v%d, 0x7fffffff" % T1); a("v_mov_b32 v%d, 0" % T2); a("v_cndmask_b32 v%d, v%d, 0, vcc" % (vsel0, T1))
a("v_mov_b32 v%d, 1" % vone)
a("buffer_store_dword v%d, v%d, s[12:15], s52 offen sc1" % (T2, vsel0))
a("buffer_store_dword v%d, v%d, s[12:15], s53 offen sc1" % (T2, vsel0))
a("v_lshlrev_b32 v%d, 4, v%d" % (vl16, L))
a("s_lshl_b32 s3, s5, 12"); a("s_add_u32 s3, s3, %d" % XB[0])
a("v_and_b32 v%d, 31, v%d" % (T0, L)); a("v_lshrrev_b32 v%d, 5, v%d" % (T1, L))
a("v_bfe_u32 v%d, v%d, 1, 3" % (T2, L))
a("v_lshlrev_b32 v%d, 7, v%d" % (T0, T0))
a("s_xor_b32 s10, s5, 1"); a("s_lshl_b32 s10, s10, 12"); a("s_add_u32 s10, s10, %d" % XB[0])
for ks in range(4):
    a("v_add_u32 v%d, %d, v%d" % (T3, 2 * ks, T1)); a("v_xor_b32 v%d, v%d, v%d" % (T3, T3, T2))
    a("v_lshl_add_u32 v%d, v%d, 4, v%d" % (T3, T3, T0))
    a("v_add_u32 v%d, s3, v%d" % (vxa + ks, T3)); a("v_add_u32 v%d, s10, v%d" % (vxa + 4 + ks, T3))
a("v_bfe_u32 v%d, v%d, 2, 2" % (T0, L)); a("v_lshl_add_u32 v%d, v%d, 3, v%d" % (T0, T1, T0))
a("v_mul_u32_u24 v%d, 224, v%d" % (T0, T0))
a("v_and_b32 v%d, 3, v%d" % (T1, L)); a("v_lshl_add_u32 v%d, v%d, 3, v%d" % (T0, T1, T0))
a("v_bfe_u32 v%d, v%d, 4, 1" % (T1, L)); a("v_mul_u32_u24 v%d, %d, v%d" % (T1, UOFF, T1)); a("v_add_u32 v%d, v%d, v%d" % (T0, T0, T1))
a("s_lshl_b32 s10, s55, 7")
a("v_add_u32 v%d, s10, v%d" % (T1, T0))
for sl in range(3):
    a("v_add_u32 v%d, %d, v%d" % (vwa + 3 + sl, WB[sl] + 96, T0))
    a("v_add_u32 v%d, %d, v%d" % (vwa + sl, WB[sl], T1))
vkr = kv.get(); vkw = kv.get()
a("s_mul_i32 s57, s5, %d" % MS)
a("v_and_b32 v%d, 15, v%d" % (T0, L)); a("v_lshrrev_b32 v%d, 4, v%d" % (T1, L)); a("v_lshlrev_b32 v%d, 4, v%d" % (T1, T1)); a("v_add_u32 v%d, s57, v%d" % (T1, T1))
a("v_mul_u32_u24 v%d, 288, v%d" % (T2, T0)); a("v_add_u32 v%d, v%d, v%d" % (vkr, T2, T1))
a("v_lshl_add_u32 v%d, v%d, 6, v%d" % (vkw, T0, T1))
a("s_mov_b32 m0, s57")
st()
L2E = 1.4426950408889634
L2Eh = struct.unpack("<f", struct.pack("<f", L2E))[0]; L2El = L2E - L2Eh
vdt = kv.get(); va2 = kv.get(); vb2 = kv.get()
a("s_waitcnt lgkmcnt(0)")
a("s_lshl_b32 s3, s50, 16"); a("s_and_b32 s10, s50, 0xffff0000"); a("s_cmp_lt_u32 s5, 2"); a("s_cselect_b32 s50, s3, s10")
a("s_lshl_b32 s3, s51, 16"); a("s_and_b32 s10, s51, 0xffff0000"); a("s_cmp_lt_u32 s5, 2"); a("s_cselect_b32 s58, s3, s10"); a("s_mov_b32 s59, s58")
a("s_mov_b32 s10, 0x%x" % f2u(L2Eh))
a("v_mov_b32 v%d, s50" % T0)
a("v_mul_f32 v%d, s10, v%d" % (T1, T0))
a("v_fma_f32 v%d, v%d, s10, -v%d" % (T2, T0, T1))
a("v_mul_f32 v%d, 0x%x, v%d" % (T3, f2u(L2El), T0)); a("v_add_f32 v%d, v%d, v%d" % (T2, T2, T3))
a("v_exp_f32 v%d, v%d" % (T1, T1))
a("v_mul_f32 v%d, 0x%x, v%d" % (T2, f2u(0.6931471805599453), T2))
a("v_fma_f32 v%d, v%d, v%d, v%d" % (T1, T1, T2, T1))
a("v_cvt_pk_bf16_f32 v%d, 0, v%d" % (vdt, T1))
a("s_waitcnt vmcnt(2)")
st()
a("v_mul_f32 v%d, v%d, v%d" % (va2, vdt, pAre)); a("v_mul_f32 v%d, v%d, v%d" % (vb2, vdt, pAim))
a("v_mul_f32 v%d, s10, v%d" % (va2, va2)); a("v_mul_f32 v%d, 0.15915494, v%d" % (vb2, vb2))
def cpx(): return kv.get(2, 2)
Z = {}
tm = kv.get(9)
for n, m in enumerate((8, 1, 128)):
    Z[m] = cpx(); t = tm + 3 * n
    if m == 1:
        a("v_exp_f32 v%d, v%d" % (t, va2)); a("v_fract_f32 v%d, v%d" % (t + 1, vb2))
    else:
        a("v_mul_f32 v%d, 0x%x, v%d" % (t, f2u(float(m)), va2)); a("v_mul_f32 v%d, 0x%x, v%d" % (t + 1, f2u(float(m)), vb2))
        a("v_exp_f32 v%d, v%d" % (t, t)); a("v_fract_f32 v%d, v%d" % (t + 1, t + 1))
for n, m in enumerate((8, 1, 128)):
    t = tm + 3 * n
    a("v_sin_f32 v%d, v%d" % (t + 2, t + 1)); a("v_cos_f32 v%d, v%d" % (t + 1, t + 1))
Y = [cpx(), cpx()]
a("v_mul_f32 v%d, v%d, v%d" % (pBre, vdt, pBre)); a("v_mul_f32 v%d, v%d, v%d" % (pBim, vdt, pBim))
a("v_mul_f32 v%d, v%d, v%d" % (Y[0], pCre, pBre)); a("v_mul_f32 v%d, v%d, v%d" % (Y[0] + 1, pCre, pBim))
a("v_fma_f32 v%d, -v%d, v%d, v%d" % (Y[0], pCim, pBim, Y[0])); a("v_fma_f32 v%d, -v%d, v%d, -v%d" % (Y[0] + 1, pCim, pBre, Y[0] + 1))
for n, m in enumerate((8, 1, 128)):
    t = tm + 3 * n
    a("v_mul_f32 v%d, v%d, v%d" % (Z[m], t, t + 1))
    a("v_mul_f32 v%d, %sv%d, v%d" % (Z[m] + 1, "-" if m == 8 else "", t, t + 2))
def cmul(d, x, y):
    return ["v_pk_mul_f32 %s, %s, %s op_sel_hi:[0,1]" % (rng(d, 2), rng(x, 2), rng(y, 2)),
            "v_pk_fma_f32 %s, %s, %s, %s op_sel:[1,1,0] op_sel_hi:[1,0,1] neg_lo:[1,0,0]" % (rng(d, 2), rng(x, 2), rng(y, 2), rng(d, 2))]
pk = kv.get(4); pkn = [0]
def put(row, src):
    p = pk + pkn[0] % 4; pkn[0] += 1
    if src is None: return ["v_mov_b32 v%d, 0x3f80" % p, "ds_write_addtid_b32 v%d offset:%d" % (p, 288 * row)]
    return ["v_cvt_pk_bf16_f32 v%d, v%d, v%d" % (p, src, src + 1), "ds_write_addtid_b32 v%d offset:%d" % (p, 288 * row)]
E = {1: Z[1]};
for e in range(2, 8): E[e] = cpx()
H = {1: Z[128]}
for h in range(2, 8): H[h] = cpx()
YF = kv.get(16, 4); XF = kv.get(16, 4); KD = kv.get(12, 4); TM = [cpx(), cpx()]
s1 = []
for j in range(16):
    if j < 15: s1 += cmul(Y[(j + 1) & 1], Y[j & 1], Z[8])
    s1 += put(j, Y[j & 1])
s2 = []
for e in range(2, 8): s2 += cmul(E[e], E[e - 1], Z[1]) + cmul(H[e], H[e - 1], Z[128])
while s1 or s2:
    for _ in range(5):
        if s1: a(s1.pop(0))
    for _ in range(2):
        if s2: a(s2.pop(0))
def frag_reads(dst):
    for ks in range(4): a("ds_read_b128 %s, v%d offset:%d" % (rng(dst + 4 * ks, 4), vkr, 64 * ks))
def tile_mfma(t):
    a("s_waitcnt lgkmcnt(0)")
    for ks in range(4):
        a("v_mfma_f32_16x16x32_bf16 %s, %s, %s, %s" % (rng(KD + 4 * t, 4), rng(YF + 4 * ks, 4), rng(XF + 4 * ks, 4), rng(KD + 4 * t, 4) if ks else "0"))
frag_reads(YF)
seq = put(0, None)
for e in range(1, 8): seq += put(e, E[e])
seq += put(8, H[1])
for e in range(1, 8): seq += cmul(TM[e & 1], H[1], E[e]) + put(8 + e, TM[e & 1])
for x in seq: a(x)
frag_reads(XF)
seq = []; n = 0
for h in (2, 3):
    seq += put(4 * (h - 2), H[h])
    for e in (2, 4, 6):
        seq += cmul(TM[n & 1], H[h], E[e]) + put(4 * (h - 2) + e // 2, TM[n & 1]); n += 1
for h in (4, 5, 6, 7):
    seq += put(8 + 2 * (h - 4), H[h]) + cmul(TM[n & 1], H[h], E[4]) + put(9 + 2 * (h - 4), TM[n & 1]); n += 1
for x in seq: a(x)
tile_mfma(0)
frag_reads(XF)
prev = H[7]
for h in range(8, 17):
    d = TM[h & 1]
    for x in cmul(d, prev, Z[128]) + put(h - 8, d): a(x)
    prev = d
tile_mfma(1)
frag_reads(XF)
tile_mfma(2)
for t in range(3): a("ds_write_b128 v%d, %s offset:%d" % (vkw, rng(KD + 4 * t, 4), 1024 * t))
assert kv.n <= 256
def reads(q):
    stg = q // 4; ks = q % 4; slot = stg % 3; fs = vfr + 24 * (q & 1)
    X0, X1 = fs, fs + 4
    W = [fs + 8 + 4 * i for i in range(4)]
    r = []
    def wr(i):
        base = vwa + slot if i < 3 else vwa + 3 + slot
        off = ks * 16 * 224 + (32 * i if i < 3 else 0)
        return [("ds_read_b64_tr_b16 %s, v%d offset:%d" % (rng(W[i], 2), base, off), W[i]),
                ("ds_read_b64_tr_b16 %s, v%d offset:%d" % (rng(W[i] + 2, 2), base, off + 4 * 224), W[i])]
    r.append(("ds_read_b128 %s, v%d offset:%d" % (rng(X0, 4), vxa + ks, slot * XS), X0))
    r += wr(0)
    r.append(("ds_read_b128 %s, v%d offset:%d" % (rng(X1, 4), vxa + 4 + ks, slot * XS), X1))
    r += wr(1) + wr(2) + wr(3)
    return r
def mfmas(q):
    fs = vfr + 24 * (q & 1); X0, X1 = fs, fs + 4
    W = [fs + 8 + 4 * i for i in range(4)]
    order = [(0, X0, W[0]), (1, X1, W[0]), (2, X0, W[1]), (3, X1, W[1]), (4, X0, W[2]), (5, X1, W[2]), (6, X0, W[3])]
    return [("v_mfma_f32_32x32x16_bf16 %s, %s, %s, %s" % (rng(vacc + 16 * t, 16), rng(w, 4), rng(x, 4), rng(vacc + 16 * t, 16) if q else "0"), (x, w)) for t, x, w in order]
a("s_setprio 1")
a("s_waitcnt vmcnt(0) lgkmcnt(0)")
st()
a("s_barrier")
st()
if TS: a("s_waitcnt lgkmcnt(0)")
a(".p2align 3")
pend = []
def issue_read(rd): a(rd[0]); pend.append(rd[1])
def need_l(regs):
    global pend
    last = -1
    for i, d in enumerate(pend):
        if d in regs: last = i
    if last >= 0:
        n = len(pend) - 1 - last
        a("s_waitcnt lgkmcnt(%d)" % min(n, 15))
        pend = pend[last + 1:] if n <= 15 else pend[len(pend) - 15:]
for rd in reads(0): issue_read(rd)
for q in range(32):
    ms = mfmas(q)
    nxt = reads(q + 1) if q + 1 < 32 else []
    los = (q % 4 == 3) and (q + 1 < 32)
    for mi, (txt, regs) in enumerate(ms):
        if los and mi == 0:
            a("s_waitcnt lgkmcnt(0)"); pend = []
        elif mi in (0, 2, 4):
            rs = set()
            for k in range(mi, mi + 2 if mi < 4 else 7): rs |= set(ms[k][1])
            need_l(rs)
        a(txt)
        if los and mi == 0:
            a("s_barrier")
            if q // 4 in (1, 4): st()
        for _ in range(2):
            if nxt: issue_read(nxt.pop(0))
st()
a("s_mul_i32 s60, s54, %d" % PANEL); a("s_mul_i32 s3, s7, %d" % (7 * 2048)); a("s_add_u32 s60, s60, s3")
a("s_lshl_b32 s3, s55, 10"); a("s_add_u32 s60, s60, s3")
a("s_add_u32 s64, s60, %d" % (3 * 2048))
a("s_lshl_b32 s3, s55, 13"); a("s_add_u32 s60, s60, s3")
a("s_xor_b32 s61, s60, 0x400"); a("s_add_u32 s62, s60, 4096"); a("s_add_u32 s63, s61, 4096")
for t in range(7):
    b = vacc + 16 * t
    for i in range(16): a("v_cvt_pk_bf16_f32 v%d, 0, v%d" % (b + i, b + i))
    for i in range(0, 8, 2): a("v_pk_mul_f32 %s, %s, %s" % (rng(b + i, 2), rng(b + i, 2), rng(b + 8 + i, 2)))
    for i in range(4): a("v_cvt_pk_bf16_f32 v%d, v%d, v%d" % (b + 8 + i, b + 2 * i, b + 2 * i + 1))
    so = "s64" if t == 6 else "s%d" % (60 + (t & 1) + (2 if t >= 4 else 0))
    off = 2048 if t in (2, 3) else 0
    a("buffer_store_dwordx4 %s, v%d, s[12:15], %s offen offset:%d sc1" % (rng(b + 8, 4), vl16, so, off))
st()
cv = VA(vxa)
vA = cv.get(); vB = cv.get(); vrd = cv.get(); vrw = cv.get(); vuu = cv.get(); vsy = cv.get()
assert cv.n <= vl16
CA = [vfr, 184]
CB = [vacc, vacc + 32]
CB = [vacc + 0, vacc + 32]; CACC = 216;
CX = vacc + 64
assert vfr + 32 <= vacc and 184 + 32 <= CACC and CACC + 32 <= 256 and vacc + 112 <= 184
a("s_lshr_b32 s10, s5, 1")
a("s_mul_i32 s3, s10, %d" % RCH); a("s_lshl_b32 s11, s55, 8"); a("s_add_u32 s3, s3, s11"); a("s_add_u32 s3, s3, %d" % (RB + 3968 - 512 * 7))
a("v_and_b32 v%d, 3, v%d" % (T0, L)); a("v_mul_u32_u24 v%d, %d, v%d" % (T0, RCS, T0))
a("v_bfe_u32 v%d, v%d, 2, 2" % (T1, L)); a("v_lshlrev_b32 v%d, 7, v%d" % (T1, T1)); a("v_sub_u32 v%d, v%d, v%d" % (T0, T0, T1))
a("v_lshrrev_b32 v%d, 4, v%d" % (T1, L)); a("v_lshlrev_b32 v%d, 4, v%d" % (T1, T1))
a("v_add3_u32 v%d, v%d, v%d, s3" % (vA, T0, T1))
a("s_mul_i32 s65, s10, %d" % US); a("s_add_u32 s65, s65, %d" % AUX)
a("s_add_u32 s3, s65, s11"); a("s_add_u32 s3, s3, 8")
a("v_and_b32 v%d, 15, v%d" % (T0, L)); a("v_lshlrev_b32 v%d, 3, v%d" % (T0, T0))
a("v_add3_u32 v%d, v%d, v%d, s3" % (vB, T0, T1))
a("s_lshl_b32 s3, s5, 12"); a("s_add_u32 s3, s3, %d" % CRED); a("v_add_u32 v%d, s3, v%d" % (vrw, vl16))
a("s_xor_b32 s3, s5, 1"); a("s_lshl_b32 s3, s3, 12"); a("s_add_u32 s3, s3, %d" % CRED); a("v_add_u32 v%d, s3, v%d" % (vrd, vl16))
a("s_lshl_b32 s3, s55, 11"); a("s_add_u32 s3, s3, s65"); a("s_add_u32 s3, s3, 128")
a("v_lshl_add_u32 v%d, v%d, 3, s3" % (vuu, L))
a("s_barrier")
st()
if TS: a("s_waitcnt lgkmcnt(0)")
def creads(s):
    A = CA[s & 1]; B = CB[s & 1]; r = []
    for i in range(8):
        r.append(("ds_read_b128 %s, v%d offset:%d" % (rng(A + 4 * i, 4), vA, 512 * (7 - i) + 64 * s), A + 4 * i))
        r.append(("ds_read_b64 %s, v%d offset:%d" % (rng(B + 4 * i, 2), vB, 512 * i + 64 * s), B + 4 * i))
        r.append(("ds_read_b64 %s, v%d offset:%d" % (rng(B + 4 * i + 2, 2), vB, 512 * i + 64 * s + 8), B + 4 * i))
    return r
pend = []
for rd in creads(0): issue_read(rd)
seen = set()
HFLAG_AT = opt("hflag", 30)
cnt = 0
for s in range(4):
    A = CA[s & 1]; B = CB[s & 1]
    nxt = creads(s + 1) if s < 3 else []
    pairs = sorted([(v, w) for v in range(8) for w in range(8) if v + w <= 7], key=lambda p: (max(p), p))
    lastmax = -1
    for (v, w) in pairs:
        if max(v, w) != lastmax:
            lastmax = max(v, w); need_l({A + 4 * lastmax, B + 4 * lastmax})
        j = v + w
        c = rng(CACC + 4 * j, 4) if j in seen else "0"; seen.add(j)
        a("v_mfma_f32_16x16x32_bf16 %s, %s, %s, %s" % (rng(CACC + 4 * j, 4), rng(A + 4 * v, 4), rng(B + 4 * w, 4), c))
        if nxt and lastmax >= 2: issue_read(nxt.pop(0))
        cnt += 1
        if cnt == HFLAG_AT:
            a("s_waitcnt vmcnt(0)")
            a("buffer_store_dword v%d, v%d, s[12:15], s52 offen sc1" % (vone, vsel0))
            st()
    assert not nxt
st()
UQ = CX; PQ = CX + 8; UF = CX + 24
for t in range(4): a("ds_read_b64 %s, v%d offset:%d" % (rng(UQ + 2 * t, 2), vuu, 512 * t))
a("s_nop 7")
a("s_cmp_eq_u32 s55, 0"); a("s_cbranch_scc1 Lcv_noswap")
for i in range(16): a("v_swap_b32 v%d, v%d" % (CACC + i, CACC + 16 + i))
a.label("Lcv_noswap")
for t in range(4): a("ds_write_b128 v%d, %s offset:%d" % (vrw, rng(CACC + 16 + 4 * t, 4), 1024 * t))
a("s_lshl_b32 s3, s5, 2"); a("s_add_u32 s3, s3, %d" % (MISC + 16)); a("v_mov_b32 v%d, s3" % T0)
a("ds_write_b32 v%d, v%d" % (T0, vone))
a("s_xor_b32 s3, s3, 4"); a("v_mov_b32 v%d, s3" % vsy)
a("s_waitcnt lgkmcnt(5)")
for t in range(4):
    for h in range(2):
        a("v_lshlrev_b32 v%d, 16, v%d" % (UF + 4 * t + 2 * h, UQ + 2 * t + h)); a("v_and_b32 v%d, 0xffff0000, v%d" % (UF + 4 * t + 2 * h + 1, UQ + 2 * t + h))
    for h in range(2): a("v_pk_mul_f32 %s, %s, s[58:59]" % (rng(UF + 4 * t + 2 * h, 2), rng(UF + 4 * t + 2 * h, 2)))
    for i in range(4): a("v_cvt_pk_bf16_f32 v%d, 0, v%d" % (UF + 4 * t + i, UF + 4 * t + i))
a("s_mov_b32 s10, 0")
a.label("Lcv_wait")
a("ds_read_b32 v%d, v%d" % (T1, vsy)); a("s_waitcnt lgkmcnt(0)")
a("v_readfirstlane_b32 s3, v%d" % T1); a("s_add_u32 s10, s10, 1")
a("s_cmp_eq_u32 s3, 1"); a("s_cbranch_scc1 Lcv_go")
a("s_cmp_lt_u32 s10, %d" % (SPIN * 10)); a("s_cbranch_scc1 Lcv_wait")
a.label("Lcv_go")
for t in range(4): a("ds_read_b128 %s, v%d offset:%d" % (rng(PQ + 4 * t, 4), vrd, 1024 * t))
a("s_lshl_b32 s60, s56, 12"); a("s_lshl_b32 s3, s55, 11"); a("s_add_u32 s60, s60, s3"); a("s_add_u32 s60, s60, %d" % AT_OFF)
a("v_lshlrev_b32 v%d, 3, v%d" % (T2, L))
for t in range(4):
    a("s_waitcnt lgkmcnt(%d)" % (3 - t))
    b = CACC + 4 * t
    for h in range(2): a("v_pk_add_f32 %s, %s, %s" % (rng(b + 2 * h, 2), rng(b + 2 * h, 2), rng(PQ + 4 * t + 2 * h, 2)))
    for i in range(4): a("v_cvt_pk_bf16_f32 v%d, 0, v%d" % (b + i, b + i))
    for h in range(2): a("v_pk_add_f32 %s, %s, %s" % (rng(b + 2 * h, 2), rng(b + 2 * h, 2), rng(UF + 4 * t + 2 * h, 2)))
    for h in range(2): a("v_cvt_pk_bf16_f32 v%d, v%d, v%d" % (UQ + 2 * t + h, b + 2 * h, b + 2 * h + 1))
    a("buffer_store_dwordx2 %s, v%d, s[12:15], s60 offen offset:%d sc1" % (rng(UQ + 2 * t, 2), T2, 512 * t))
st()
a("s_waitcnt vmcnt(0)")
a("buffer_store_dword v%d, v%d, s[12:15], s53 offen sc1" % (vone, vsel0))
st()
if DBG:
    a("s_mul_i32 s3, s5, 9280"); a("s_add_u32 s10, s3, %d" % RB); a("v_add_u32 v%d, s10, v%d" % (T0, vl16))
    a("s_mul_i32 s11, s2, %d" % (2 * RCH)); a("s_add_u32 s11, s11, s3"); a("s_add_u32 s11, s11, %d" % DBG_OFF)
    for i in range(10):
        a("ds_read_b128 %s, v%d offset:%d" % (rng(CX, 4), T0, 1024 * i)); a("s_waitcnt lgkmcnt(0)")
        if i == 9:
            a("s_mov_b64 exec, 0xf")
        a("buffer_store_dwordx4 %s, v%d, s[12:15], s11 offen" % (rng(CX, 4), vl16)); a("s_add_u32 s11, s11, 1024"); a("s_waitcnt vmcnt(0)")
    a("s_mov_b64 exec, -1")
store_stamps(st.n)
a.label("Lend")
a("s_endpgm")
def rbf_int(l):
    u = np.array([l], np.float32).view(np.uint32)[0]
    r = ((int(u) + 0x7FFF + ((int(u) >> 16) & 1)) >> 16) << 16
    return int(np.array([r], np.uint32).view(np.float32)[0])
def taddr(l):
    if l < 0: return 3072
    lp = rbf_int(l)
    s = 0 if lp < 256 else 1 if lp < 512 else 2 if lp < 1024 else 3
    y = ((lp >> 7) << 3) | (lp & 7)
    row = 8 * s + (y >> s); j = (lp >> 3) & 15
    return row * 64 + j * 4
for r in range(4):
    for lane in range(64):
        for z in range(-3, 8):
            gr, gz = GZ[vidx(r, z)]
            assert gr == r and taddr(8 * (64 * r + lane) + z) == taddr(8 * (64 * r + lane) + gz), (r, lane, z)
body, added = hazard.fix(a.lines, verbose=bool(opt("vh")))
txt = "\n".join(body) + "\n.p2align 4\n.type Ltable,@object\nLtable:\n"
for blk in range(3):
    for lane in range(64):
        w = []
        for k in range(4):
            i = 2 * (4 * blk + k)
            (r0, z0), (r1, z1) = GZ[i], GZ[i + 1]
            w.append(taddr(8 * (64 * r0 + lane) + z0) | (taddr(8 * (64 * r1 + lane) + z1) << 16))
        txt += ".long " + ", ".join("0x%08x" % x for x in w) + "\n"
txt += ".size Ltable, 3072\n"
print("hazard nops added:", added, file=sys.stderr)
open(outf, "w").write(single(txt, grid=256, block=512, vgpr=256, accum=256, lds=LDS_BYTES))
```

```python
import sys, struct
import numpy as np
from asmlib import *
import hazard
outf = sys.argv[1]
opts = dict(x.split("=") for x in sys.argv[2:])
def opt(k, d=0): return int(opts.get(k, d))
TS = opt("ts")
DBG = opt("dbg")
SPAN = opt("span")
H_OFF, UT_OFF, AT_OFF, WDT_OFF, G_OFF = 0, 0x800000, 0xA00000, 0xC00000, 0xE00000
FH_OFF, FA_OFF, FU_OFF, FW_OFF, FG_OFF, EP_OFF = 0xE40000, 0xE60000, 0xE10000, 0xE12000, 0xE14000, 0xE08000
DBG_OFF = 0x1000000
TS_OFF = 0x8000000
PANEL = 112 * 2048
MS = 4608; AUX = 4 * MS; US = 4224; MISC = AUX + 2 * US
XS = 16384; WS_ = 28928; UOFF = 14336 + 128
XB = [27136, 27136 + XS, 27136 + 2 * XS]
WB = [105216, 134144, 76288]
LDS_BYTES = 163072
RB = XB[2]; RCS = 4640; RCH = 4 * RCS
CRED = XB[0]; GRED = WB[0]; ATS = XB[1]
SPIN = 30000
def rng(b, n): return "v[%d:%d]" % (b, b + n - 1)
def f2u(x): return struct.unpack("<I", struct.pack("<f", x))[0]
class VA:
    def __init__(s, start=1): s.n = start; s.hi = start
    def get(s, n=1, al=1):
        s.n = (s.n + al - 1) // al * al
        r = s.n; s.n += n; s.hi = max(s.hi, s.n); assert s.n <= 256, s.n; return r
a = Asm()
L = 0
class Stamps:
    def __init__(s): s.n = 0
    def __call__(s, name=""):
        if TS:
            assert s.n < 14 and not SPAN
            a("s_memtime s[%d:%d]" % (70 + 2 * s.n, 71 + 2 * s.n)); s.n += 1
def store_stamps(n):
    if not TS: return
    a("s_waitcnt lgkmcnt(0)")
    a("s_lshl_b32 s3, s2, 3"); a("s_add_u32 s3, s3, s4"); a("s_lshl_b32 s3, s3, 7"); a("s_add_u32 s3, s3, %d" % TS_OFF)
    a("v_cmp_eq_u32 vcc, 0, v0"); a("v_mov_b32 v1, 0x7fffffff"); a("v_cndmask_b32 v1, v1, v0, vcc")
    a("v_mov_b32 v2, s68"); a("v_mov_b32 v3, s69")
    a("buffer_store_dwordx2 v[2:3], v1, s[12:15], s3 offen")
    for i in range(15):
        a("v_mov_b32 v%d, s%d" % (4 + 2 * i, 70 + 2 * min(i, n - 1))); a("v_mov_b32 v%d, s%d" % (5 + 2 * i, 71 + 2 * min(i, n - 1)))
        a("buffer_store_dwordx2 v[%d:%d], v1, s[12:15], s3 offen offset:%d" % (4 + 2 * i, 5 + 2 * i, 8 + 8 * i))
def srd(d, lo, hi, nbytes):
    a("s_mov_b32 s%d, s%d" % (d, lo)); a("s_and_b32 s%d, s%d, 0xffff" % (d + 1, hi))
    a("s_mov_b32 s%d, %d" % (d + 2, nbytes)); a("s_mov_b32 s%d, 0x20000" % (d + 3))
def poll(label, loads, cnt="s10"):
    a("s_mov_b32 %s, 0" % cnt)
    a.label(label)
    for t, r in loads: a(t)
    a("s_waitcnt vmcnt(0)")
    tagcmp([r for t, r in loads])
    a("s_cbranch_scc1 %s_ok" % label)
    a("s_add_u32 %s, %s, 1" % (cnt, cnt))
    a("s_sleep %d" % opt("sleep", 1))
    a("s_cmp_lt_u32 %s, %d" % (cnt, SPIN))
    a("s_cbranch_scc1 %s" % label)
    a.label(label + "_ok")
def tagcmp(rs):
    a("v_cmp_ne_u64 vcc, s[100:101], %s" % rng(rs[0], 2))
    for r in rs[1:]:
        a("v_cmp_ne_u64 s[98:99], s[100:101], %s" % rng(r, 2))
        a("s_or_b64 vcc, vcc, s[98:99]")
    a("s_cmp_eq_u64 vcc, 0")
def epoch_load():
    a("s_add_u32 s98, s48, %d" % EP_OFF); a("s_addc_u32 s99, s49, 0")
    a("s_load_dwordx2 s[100:101], s[98:99], 0")
def epoch_fix():
    a("s_add_u32 s100, s100, 0x7f4a7c15"); a("s_addc_u32 s101, s101, 0x9e3779b9")

if TS: a("s_memtime s[68:69]")
a("s_cmp_ge_u32 s2, 256"); a("s_cbranch_scc1 Lend")
a("s_load_dwordx16 s[16:31], s[0:1], 0")
a("s_load_dwordx16 s[32:47], s[0:1], 64")
a("s_load_dwordx2 s[48:49], s[0:1], 128")
if opt("cpf", 1):
    a("s_getpc_b64 s[60:61]")
    a.label("Lpc1")
    a("s_and_b32 s61, s61, 0xffff"); a("s_mov_b32 s62, Ltable_end-Lpc1"); a("s_mov_b32 s63, 0x20000")
    a("v_lshlrev_b32 v1, 7, v0")
    a("buffer_load_dword v255, v1, s[60:63], 0 offen")
if SPAN: a("s_memrealtime s[96:97]")
a("v_lshrrev_b32 v1, 6, v0"); a("v_and_b32 v0, 63, v0")
a("v_readfirstlane_b32 s4, v1")
a("s_and_b32 s10, s2, 7"); a("s_lshr_b32 s11, s2, 3")
a("s_and_b32 s6, s10, 1"); a("s_lshl_b32 s6, s6, 3"); a("s_and_b32 s3, s11, 7"); a("s_add_u32 s6, s6, s3")
a("s_lshr_b32 s7, s10, 1"); a("s_lshl_b32 s7, s7, 2"); a("s_lshr_b32 s3, s11, 3"); a("s_add_u32 s7, s7, s3")
a("s_lshl_b32 s8, s10, 2"); a("s_and_b32 s3, s11, 3"); a("s_add_u32 s8, s8, s3")
a("s_lshr_b32 s9, s11, 2")
a("s_and_b32 s5, s4, 3")
a("s_cmp_lt_u32 s4, 4"); a("s_cbranch_scc1 Lrole_M")
a("s_cmp_ge_u32 s4, 6"); a("s_cbranch_scc1 Lrole_aux")

st = Stamps()
va = VA(1)
T0, T1, T2, T3 = va.get(), va.get(), va.get(), va.get()
vdx = va.get(4); vdw = va.get(7)
a("s_setprio %d" % opt("pl0", 0))
a("s_mov_b32 s50, 4682")
assert all(((x * 4682) >> 16) == x // 14 for x in range(448))
for i in range(7):
    a("v_add_u32 v%d, %d, v%d" % (T0, 64 * i, L))
    a("v_mul_u32_u24 v%d, s50, v%d" % (T1, T0))
    a("v_lshrrev_b32 v%d, 16, v%d" % (T1, T1))
    a("v_mul_u32_u24 v%d, %d, v%d" % (T1, 3584 - 224, T1))
    a("v_lshl_add_u32 v%d, v%d, 4, v%d" % (T1, T0, T1))
    a("v_subrev_u32 v%d, %d, v%d" % (vdw + i, 1024 * (i % 4), T1))
a("v_lshrrev_b32 v%d, 3, v%d" % (T0, L))
a("v_lshrrev_b32 v%d, 4, v%d" % (T1, L)); a("v_xor_b32 v%d, v%d, v%d" % (T1, T1, L)); a("v_and_b32 v%d, 7, v%d" % (T1, T1))
a("v_lshlrev_b32 v%d, 4, v%d" % (T1, T1)); a("v_lshl_add_u32 v%d, v%d, 10, v%d" % (vdx, T0, T1))
a("v_xor_b32 v%d, 64, v%d" % (T2, vdx))
a("v_add_u32 v%d, %d, v%d" % (vdx + 1, 7168, T2)); a("v_add_u32 v%d, %d, v%d" % (vdx + 2, 2 * 7168, vdx)); a("v_add_u32 v%d, %d, v%d" % (vdx + 3, 3 * 7168, T2))
a("s_and_b32 s51, s4, 1")
a("s_lshl_b32 s60, s6, 17"); a("s_lshl_b32 s3, s51, 16"); a("s_add_u32 s60, s60, s3")
a("s_mul_i32 s61, s7, 224")
a("s_lshl_b32 s62, s51, 13"); a("s_mul_i32 s63, s51, %d" % UOFF)
a("s_waitcnt lgkmcnt(0)")
a("s_cmp_eq_u32 s51, 0")
a("s_cselect_b32 s56, s36, s38"); a("s_cselect_b32 s57, s37, s39"); a("s_and_b32 s57, s57, 0xffff")
a("s_mov_b32 s58, %d" % (512 * 1792 * 2)); a("s_mov_b32 s59, 0x20000")
srd(52, 16, 17, 0x200000)
def dma_stage(s):
    slot = s % 3
    for half in range(2):
        a("s_add_u32 s64, s61, %d" % ((s * 64 + half * 32) * 3584))
        a("s_add_u32 m0, s63, %d" % (WB[slot] + half * 7168))
        for i in range(4): a("buffer_load_dwordx4 v%d, s[56:59], s64 offen offset:%d lds" % (vdw + i, 1024 * i))
        a("s_add_u32 m0, s63, %d" % (WB[slot] + half * 7168 + 4096))
        for i in range(4, 7): a("buffer_load_dwordx4 v%d, s[56:59], s64 offen offset:%d lds" % (vdw + i, 1024 * (i - 4)))
        a("s_add_u32 s65, s60, %d" % (s * 128 + half * 32768))
        a("s_add_u32 m0, s62, %d" % (XB[slot] + half * 4096))
        for i in range(4): a("buffer_load_dwordx4 v%d, s[52:55], s65 offen offset:%d lds" % (vdx + i, 1024 * i))
st()
epoch_load()
dma_stage(0); dma_stage(1)
srd(12, 48, 49, 0x10000000)
a("s_setprio %d" % opt("pl1", 3))
a("s_waitcnt vmcnt(22) lgkmcnt(0)"); epoch_fix(); st(); a("s_barrier")
dma_stage(2)
for s in range(0, 6):
    a("s_waitcnt vmcnt(22)");
    if s in (0, 2, 4): st()
    a("s_barrier")
    if s + 3 < 8: dma_stage(s + 3)
a("s_branch Lg2_common")
ld_st = st.n

a.label("Lrole_aux")
st = Stamps()
va = VA(1)
T0, T1, T2, T3 = va.get(), va.get(), va.get(), va.get()
vrow = va.get(); vl16 = va.get(); vtrA = va.get(); vtrB = va.get(); vwr = va.get(); vuo = va.get(); vsel = va.get()
vtab = va.get(12, 4); vadr = va.get(24)
vx = va.get(16, 4); vwd = va.get(16, 4); vg = va.get(16, 4); vgw = va.get(4, 4); vgwu = va.get(8, 2); vt8 = va.get(8, 2); vsum = va.get(4, 4)
vV = va.get(24)
vE = 192
assert va.n <= 192
a("s_setprio %d" % opt("pa0", 2))
a("s_and_b32 s51, s4, 1")
a("v_lshlrev_b32 v%d, 4, v%d" % (vl16, L))
a("v_lshrrev_b32 v%d, 3, v%d" % (T0, L)); a("v_and_b32 v%d, 7, v%d" % (T1, L)); a("v_lshlrev_b32 v%d, 4, v%d" % (T1, T1))
a("v_lshl_add_u32 v%d, v%d, 10, v%d" % (vrow, T0, T1))
a("s_getpc_b64 s[60:61]")
a.label("Lpc0")
a("s_add_u32 s60, s60, Ltable-Lpc0"); a("s_addc_u32 s61, s61, 0"); a("s_and_b32 s61, s61, 0xffff")
a("s_mov_b32 s62, 3072"); a("s_mov_b32 s63, 0x20000")
for i in range(3): a("buffer_load_dwordx4 %s, v%d, s[60:63], 0 offen offset:%d" % (rng(vtab + 4 * i, 4), vl16, 1024 * i))
a("s_lshl_b32 s64, s6, 7"); a("s_and_b32 s3, s7, 1"); a("s_lshl_b32 s3, s3, 6"); a("s_add_u32 s64, s64, s3")
a("s_lshl_b32 s3, s51, 5"); a("s_add_u32 s64, s64, s3")
a("s_lshr_b32 s65, s7, 1")
a("s_lshl_b32 s66, s64, 10"); a("s_lshl_b32 s3, s65, 7"); a("s_add_u32 s66, s66, s3")
a("s_lshl_b32 s67, s2, 1"); a("s_add_u32 s67, s67, s51")
a("s_and_b32 s50, s67, 7"); a("s_lshr_b32 s67, s67, 3")
a("s_waitcnt lgkmcnt(0)")
srd(52, 16, 17, 0x200000)
srd(56, 40, 41, 1792 * 512 * 2)
epoch_load()
for i in range(4):
    a("buffer_load_dwordx4 %s, v%d, s[52:55], s66 offen" % (rng(vx + 4 * i, 4), vrow))
    if i < 3: a("s_add_u32 s66, s66, 8192")
a("s_min_u32 s66, s67, 55"); a("s_lshl_b32 s66, s66, 15"); a("s_lshl_b32 s3, s50, 7"); a("s_add_u32 s66, s66, s3")
for i in range(4):
    a("buffer_load_dwordx4 %s, v%d, s[56:59], s66 offen" % (rng(vwd + 4 * i, 4), vrow))
    if i < 3: a("s_add_u32 s66, s66, 8192")
a("s_lshl_b32 s11, s6, 7"); a("s_lshl_b32 s3, s7, 3"); a("s_add_u32 s11, s11, s3"); a("s_lshl_b32 s3, s51, 2"); a("s_add_u32 s11, s11, s3")
a("s_lshl_b32 s66, s11, 10")
for i in range(4): a("buffer_load_dwordx4 %s, v%d, s[52:55], s66 offen offset:%d" % (rng(vg + 4 * i, 4), vl16, 1024 * i))
srd(56, 42, 43, 1024)
a("buffer_load_dwordx4 %s, v%d, s[56:59], 0 offen" % (rng(vgw, 4), vl16))
srd(12, 48, 49, 0x10000000)
a("s_mul_i32 s66, s51, %d" % US); a("s_add_u32 s66, s66, %d" % AUX)
a("v_add_u32 v%d, s66, v%d" % (vwr, vl16))
a("v_bfe_u32 v%d, v%d, 2, 2" % (T0, L)); a("v_and_b32 v%d, 3, v%d" % (T1, L)); a("v_lshlrev_b32 v%d, 3, v%d" % (T1, T1))
a("v_lshl_add_u32 v%d, v%d, 7, v%d" % (T0, T0, T1)); a("v_add_u32 v%d, s66, v%d" % (T0, T0))
a("v_lshrrev_b32 v%d, 4, v%d" % (T1, L))
a("v_lshl_add_u32 v%d, v%d, 10, v%d" % (vtrA, T1, T0))
a("v_lshrrev_b32 v%d, 5, v%d" % (T2, L)); a("v_lshl_add_u32 v%d, v%d, 9, v%d" % (vtrB, T2, T0))
a("v_and_b32 v%d, 1, v%d" % (T2, T1)); a("v_lshl_add_u32 v%d, v%d, 5, v%d" % (vtrB, T2, vtrB))
a("v_and_b32 v%d, 15, v%d" % (T2, L)); a("v_lshlrev_b32 v%d, 12, v%d" % (T2, T2)); a("v_lshl_add_u32 v%d, v%d, 4, v%d" % (vuo, T1, T2))
a("v_mov_b32 v%d, 0" % T0); a("v_lshlrev_b32 v%d, 2, v%d" % (T1, L)); a("ds_write_b32 v%d, v%d offset:%d" % (T1, T0, MISC))
st()
a("s_waitcnt vmcnt(9) lgkmcnt(0)")
epoch_fix()
st()
for i in range(4): a("ds_write_b128 v%d, %s offset:%d" % (vwr, rng(vx + 4 * i, 4), 1024 * i))
for i in range(4):
    a("ds_read_b64_tr_b16 %s, v%d offset:%d" % (rng(vV + 0, 0 + 2) if False else rng(vE + 4 * i, 2), vtrA, 32 * i))
    a("ds_read_b64_tr_b16 %s, v%d offset:%d" % (rng(vE + 4 * i + 2, 2), vtrA, 32 * i + 512))
a("s_waitcnt vmcnt(5)")
for i in range(4): a("ds_write_b128 v%d, %s offset:%d" % (vwr, rng(vwd + 4 * i, 4), 1024 * i))
for e in range(2):
    for dt in range(2):
        r = vE + 16 + 4 * (2 * e + dt)
        a("ds_read_b64_tr_b16 %s, v%d offset:%d" % (rng(r, 2), vtrB, 2048 * e + 64 * dt))
        a("ds_read_b64_tr_b16 %s, v%d offset:%d" % (rng(r + 2, 2), vtrB, 2048 * e + 64 * dt + 1024))
a("s_lshl_b32 s66, s65, 18"); a("s_lshl_b32 s3, s64, 1"); a("s_add_u32 s66, s66, s3"); a("s_add_u32 s66, s66, %d" % UT_OFF)
a("s_waitcnt lgkmcnt(12)")
for i in range(4):
    a("buffer_store_dwordx4 %s, v%d, s[12:15], s66 offen sc1" % (rng(vE + 4 * i, 4), vuo))
    if i < 3: a("s_add_u32 s66, s66, 0x10000")
a("s_mul_i32 s66, s50, %d" % PANEL); a("s_lshl_b32 s3, s67, 12"); a("s_add_u32 s66, s66, s3"); a("s_add_u32 s66, s66, %d" % WDT_OFF)
a("s_waitcnt lgkmcnt(0)")
a("s_cmp_ge_u32 s2, 224"); a("s_cbranch_scc1 Laux_nowd")
for i in range(4): a("buffer_store_dwordx4 %s, v%d, s[12:15], s66 offen offset:%d sc1" % (rng(vE + 16 + 4 * i, 4), vl16, 1024 * i))
a.label("Laux_nowd")
st()
a("s_barrier")
a("s_waitcnt vmcnt(4)")
if opt("g1pf", 1):
    PS = opt("g1ps", 4)
    a("v_and_b32 v%d, 31, v%d" % (T0, L)); a("v_lshlrev_b32 v%d, 10, v%d" % (T0, T0)); a("v_lshrrev_b32 v%d, 5, v%d" % (T1, L))
    a("v_lshl_add_u32 v%d, v%d, 7, v%d" % (T0, T1, T0))
    a("s_lshl_b32 s3, s6, 2"); a("s_and_b32 s10, s7, 3"); a("s_add_u32 s3, s3, s10"); a("s_lshl_b32 s60, s3, 15")
    a("s_lshl_b32 s61, s51, 8"); a("s_add_u32 s60, s60, s61"); a("s_add_u32 s60, s60, %d" % (PS * 128))
    a("buffer_load_dword v254, v%d, s[52:55], s60 offen" % T0)
    a("s_cmp_eq_u32 s51, 0")
    a("s_cselect_b32 s56, s36, s38"); a("s_cselect_b32 s57, s37, s39"); a("s_and_b32 s57, s57, 0xffff")
    a("s_mov_b32 s58, %d" % (512 * 1792 * 2)); a("s_mov_b32 s59, 0x20000")
    a("v_lshrrev_b32 v%d, 4, v%d" % (T0, L)); a("v_lshlrev_b32 v%d, 6, v%d" % (T0, T0)); a("v_bfe_u32 v%d, v%d, 3, 1" % (T1, L)); a("v_add_u32 v%d, v%d, v%d" % (T0, T0, T1))
    a("v_mul_u32_u24 v%d, 3584, v%d" % (T0, T0)); a("v_and_b32 v%d, 7, v%d" % (T1, L)); a("v_min_u32 v%d, 6, v%d" % (T1, T1))
    a("v_lshl_add_u32 v%d, v%d, 7, v%d" % (T0, T1, T0))
    a("s_and_b32 s3, s3, 31"); a("s_lshl_b32 s3, s3, 1"); a("s_add_u32 s3, s3, %d" % (64 * PS)); a("s_mul_i32 s60, s3, 3584")
    a("s_lshr_b32 s3, s7, 2"); a("s_mul_i32 s3, s3, 896"); a("s_add_u32 s60, s60, s3")
    a("buffer_load_dword v254, v%d, s[56:59], s60 offen" % T0)
for i in range(4):
    a("v_lshlrev_b32 v%d, 16, v%d" % (vgwu + 2 * i, vgw + i)); a("v_and_b32 v%d, 0xffff0000, v%d" % (vgwu + 2 * i + 1, vgw + i))
for r in range(4):
    for i in range(4):
        a("v_lshlrev_b32 v%d, 16, v%d" % (vt8 + 2 * i, vg + 4 * r + i)); a("v_and_b32 v%d, 0xffff0000, v%d" % (vt8 + 2 * i + 1, vg + 4 * r + i))
    for i in range(4): a("v_pk_mul_f32 %s, %s, %s" % (rng(vt8 + 2 * i, 2), rng(vt8 + 2 * i, 2), rng(vgwu + 2 * i, 2)))
    for i in range(8): a("v_cvt_pk_bf16_f32 v%d, 0, v%d" % (vt8 + i, vt8 + i))
    a("v_pk_add_f32 %s, %s, %s" % (rng(vt8, 2), rng(vt8, 2), rng(vt8 + 2, 2)))
    a("v_pk_add_f32 %s, %s, %s" % (rng(vt8 + 4, 2), rng(vt8 + 4, 2), rng(vt8 + 6, 2)))
    a("v_pk_add_f32 %s, %s, %s" % (rng(vt8, 2), rng(vt8, 2), rng(vt8 + 4, 2)))
    a("v_add_f32 v%d, v%d, v%d" % (vsum + r, vt8, vt8 + 1))
for m in ("quad_perm:[1,0,3,2] row_mask:0xf bank_mask:0xf", "quad_perm:[2,3,0,1] row_mask:0xf bank_mask:0xf",
          "row_half_mirror row_mask:0xf bank_mask:0xf", "row_mirror row_mask:0xf bank_mask:0xf",
          "row_bcast:15 row_mask:0xa bank_mask:0xf", "row_bcast:31 row_mask:0xc bank_mask:0xf"):
    for r in range(4): a("v_add_f32_dpp v%d, v%d, v%d %s" % (vsum + r, vsum + r, vsum + r, m))
for r in range(4): a("v_cvt_pk_bf16_f32 v%d, 0, v%d" % (vsum + r, vsum + r))
for r in range(4): a("v_mul_f32 v%d, 0x%x, v%d" % (vsum + r, f2u(-1.4426950408889634), vsum + r))
for r in range(4): a("v_exp_f32 v%d, v%d" % (vsum + r, vsum + r))
for r in range(4): a("v_add_f32 v%d, 1.0, v%d" % (vsum + r, vsum + r))
for r in range(4): a("v_rcp_f32 v%d, v%d" % (vsum + r, vsum + r))
for r in range(4): a("v_cvt_pk_bf16_f32 v%d, 0, v%d" % (vsum + r, vsum + r))
a("v_cmp_eq_u32 vcc, 63, v%d" % L); a("v_mov_b32 v%d, 0x7fffffff" % T0); a("v_cndmask_b32 v%d, v%d, 0, vcc" % (vsel, T0))
a("s_lshl_b32 s66, s11, 2"); a("s_add_u32 s66, s66, %d" % G_OFF)
a("buffer_store_dwordx4 %s, v%d, s[12:15], s66 offen sc1" % (rng(vsum, 4), vsel))
st()
a("s_barrier")
a("s_mul_i32 s66, s51, %d" % (2 * MS))
a("v_add_u32 v%d, s66, v%d" % (T3, vl16))
for i in range(3):
    a("ds_read_b128 %s, v%d offset:%d" % (rng(vx + 4 * i, 4), T3, 1024 * i))
    a("ds_read_b128 %s, v%d offset:%d" % (rng(vwd + 4 * i, 4), T3, 1024 * i + MS))
a("s_mul_i32 s3, s66, 0x10001")
for i in range(12): a("v_add_u32 v%d, s3, v%d" % (vtab + i, vtab + i))
for i in range(12):
    a("v_and_b32 v%d, 0xffff, v%d" % (vadr + 2 * i, vtab + i)); a("v_lshrrev_b32 v%d, 16, v%d" % (vadr + 2 * i + 1, vtab + i))
a("s_waitcnt lgkmcnt(0)")
for i in range(6): a("v_pk_add_f32 %s, %s, %s" % (rng(vx + 2 * i, 2), rng(vx + 2 * i, 2), rng(vwd + 2 * i, 2)))
for i in range(4): a("v_mov_b32 v%d, 0" % (vx + 12 + i))
for i in range(4): a("ds_write_b128 v%d, %s offset:%d" % (T3, rng(vx + 4 * i, 4), 1024 * i))
for i in range(24): a("ds_read_b32 v%d, v%d" % (vV + i, vadr + i))
a("s_lshl_b32 s3, s65, 9"); a("s_lshr_b32 s10, s64, 2"); a("s_add_u32 s3, s3, s10"); a("s_add_u32 s3, s3, %d" % FU_OFF)
a("v_mov_b32 v%d, 0x7fffffff" % T0); a("v_writelane_b32 v%d, s3, 0" % T0)
a("s_lshl_b32 s3, s50, 9"); a("s_lshl_b32 s10, s67, 3"); a("s_add_u32 s3, s3, s10"); a("s_add_u32 s3, s3, %d" % FW_OFF)
a("v_writelane_b32 v%d, s3, 1" % T0)
a("s_lshl_b32 s3, s11, 1"); a("s_add_u32 s3, s3, %d" % FG_OFF)
a("v_writelane_b32 v%d, s3, 2" % T0)
a("v_mov_b32 v%d, s100" % vt8); a("v_mov_b32 v%d, s101" % (vt8 + 1))
a("s_waitcnt vmcnt(0)")
a("buffer_store_dwordx2 %s, v%d, s[12:15], 0 offen sc1" % (rng(vt8, 2), T0))
a("s_waitcnt lgkmcnt(0)")
st()
a("s_barrier")
def vidx(r, z):
    if r == 0: return z + 3
    if r == 1: return 11 + {-3: 0, -2: 1, -1: 2, 0: 2, 1: 2, 2: 2, 3: 3, 4: 3, 5: 3, 6: 4, 7: 4}[z]
    b = 16 + 4 * (r - 2)
    return b + (0 if z == -3 else 1 if z <= 3 else 2 if z == 4 else 3)
GZ = [(0, z) for z in range(-3, 8)] + [(1, z) for z in (-3, -2, 0, 4, 6)] + [(r, z) for r in (2, 3) for z in (-3, 0, 4, 5)]
assert len(GZ) == 24
for r in range(4):
    for c in range(4):
        for k in range(4):
            z = 4 + c - 2 * k
            a("v_cvt_pk_bf16_f32 v%d, v%d, v%d" % (vE + 16 * r + 4 * c + k, vV + vidx(r, z), vV + vidx(r, z - 1)))
a("s_barrier")
a("s_barrier")
a("v_lshlrev_b32 v%d, 3, v%d" % (T1, L)); a("v_and_b32 v%d, 0x7f, v%d" % (T2, T1))
a("s_lshr_b32 s60, s2, 5"); a("s_lshl_b32 s60, s60, 9"); a("s_add_u32 s60, s60, %d" % FU_OFF)
a("s_lshl_b32 s61, s9, 9"); a("s_add_u32 s61, s61, %d" % FW_OFF)
a("s_lshl_b32 s62, s8, 7"); a("s_add_u32 s62, s62, %d" % FG_OFF)
poll("Lp_f1", [("buffer_load_dwordx2 %s, v%d, s[12:15], s60 offen sc1" % (rng(vt8, 2), T1), vt8),
               ("buffer_load_dwordx2 %s, v%d, s[12:15], s61 offen sc1" % (rng(vt8 + 2, 2), T1), vt8 + 2),
               ("buffer_load_dwordx2 %s, v%d, s[12:15], s62 offen sc1" % (rng(vt8 + 4, 2), T2), vt8 + 4)])
st()
a("s_lshl_b32 s66, s2, 1"); a("s_add_u32 s66, s66, s51"); a("s_lshl_b32 s66, s66, 12"); a("s_add_u32 s66, s66, %d" % UT_OFF)
for i in range(4): a("buffer_load_dwordx4 %s, v%d, s[12:15], s66 offen offset:%d sc1" % (rng(vx + 4 * i, 4), vl16, 1024 * i))
if opt("wpf", 1):
    a("v_lshlrev_b32 v%d, 10, v%d" % (T0, L)); a("v_mov_b32 v%d, 0x7fffffff" % T1); a("v_cmp_gt_u32 vcc, 56, v%d" % L); a("v_cndmask_b32 v%d, v%d, v%d, vcc" % (T0, T1, T0))
    a("s_and_b32 s3, s8, 3"); a("s_lshl_b32 s3, s3, 1"); a("s_add_u32 s3, s3, s51"); a("s_lshl_b32 s3, s3, 7")
    a("s_mul_i32 s60, s9, %d" % PANEL); a("s_add_u32 s60, s60, s3"); a("s_add_u32 s60, s60, %d" % WDT_OFF)
    for i in range(4):
        a("buffer_load_dword v%d, v%d, s[12:15], s60 offen sc1" % (vt8, T0))
        if i < 3: a("s_add_u32 s60, s60, %d" % (56 * 1024))
a("s_barrier")
for i in range(4): a("v_mov_b32 v%d, 0" % (vwd + i))
a("ds_write_b128 v%d, %s" % (vwr, rng(vwd, 4)))
a("s_mul_i32 s66, s51, %d" % RCH); a("s_add_u32 s66, s66, %d" % (RB + 1008))
a("v_sub_u32 v%d, s66, v%d" % (T3, vl16))
a("v_and_b32 v%d, 31, v%d" % (T0, L)); a("v_lshrrev_b32 v%d, 5, v%d" % (T1, L)); a("v_mul_u32_u24 v%d, %d, v%d" % (T1, RCS, T1))
a("v_lshl_add_u32 v%d, v%d, 4, v%d" % (T0, T0, T1)); a("s_add_u32 s66, s66, %d" % (4096 - 1008)); a("v_add_u32 v%d, s66, v%d" % (T2, T0))
a("s_waitcnt vmcnt(%d)" % (4 if opt("wpf", 1) else 0))
for i in range(4): a("ds_write_b128 v%d, %s offset:%d" % (vwr, rng(vx + 4 * i, 4), 128 + 1024 * i))
st()
a("s_barrier")
for r in range(4):
    for c in range(4): a("ds_write_b128 v%d, %s offset:%d" % (T3, rng(vE + 16 * r + 4 * c, 4), c * RCS + (3 - r) * 1024))
a("ds_write_b128 v%d, %s" % (T2, rng(vwd, 4)))
a("ds_write_b128 v%d, %s offset:%d" % (T2, rng(vwd, 4), 2 * RCS))
a("s_waitcnt lgkmcnt(0)")
while st.n < ld_st: st()
aux_st = st.n

a.label("Lg2_common")
a("s_nop 4")
st.n = max(ld_st, aux_st)
va = VA(1)
voWa, voWb, voHa, voHb, vfo, vfl, vfl1, vgate, vpf = [va.get() for _ in range(9)]
assert vfl % 2 == 0
POOL0 = 12; NSLOT = 45; ACC = 192
assert POOL0 + 4 * NSLOT == ACC
a("s_setprio 0")
a("s_and_b32 s50, s5, 1"); a("s_lshl_b32 s50, s50, 10")
a("s_lshr_b32 s51, s5, 1"); a("s_lshl_b32 s51, s51, 10")
a("v_lshlrev_b32 v%d, 4, v%d" % (vfl, L))
a("v_add_u32 v%d, s50, v%d" % (voWa, vfl)); a("v_xor_b32 v%d, 0x400, v%d" % (voWb, voWa))
a("v_add_u32 v%d, s51, v%d" % (voHa, vfl)); a("v_xor_b32 v%d, 0x400, v%d" % (voHb, voHa))
a("s_mul_i32 s3, s5, %d" % (28 * 2048))
a("s_mul_i32 s60, s9, %d" % PANEL); a("s_add_u32 s60, s60, s3"); a("s_add_u32 s60, s60, %d" % WDT_OFF)
a("s_mul_i32 s61, s8, %d" % PANEL); a("s_add_u32 s61, s61, s3")
free = list(range(NSLOT))
slot_of = {}
vq = []
soff = {"W": None, "H": None}
def g2_load(kind, k, ab):
    sl = free.pop(0); slot_of[(kind, k, ab)] = sl
    sreg = "s62" if kind == "W" else "s63"
    if soff[kind] != k >> 1:
        a("s_add_u32 %s, %s, %d" % (sreg, "s60" if kind == "W" else "s61", 4096 * (k >> 1))); soff[kind] = k >> 1
    vo = {("W", 0): voWa, ("W", 1): voWb, ("H", 0): voHa, ("H", 1): voHb}[(kind, ab)]
    a("buffer_load_dwordx4 %s, v%d, s[12:15], %s offen offset:%d sc1" % (rng(POOL0 + 4 * sl, 4), vo, sreg, 2048 * (k & 1)))
    vq.append((kind, k, ab))
def g2_wait(tags):
    global vq
    last = -1
    for i, t in enumerate(vq):
        if t in tags: last = i
    if last >= 0:
        a("s_waitcnt vmcnt(%d)" % (len(vq) - 1 - last)); vq = vq[last + 1:]
NPRE = opt("npre", 18); N1 = opt("n1", 6)
for k in range(N1): g2_load("W", k, 0); g2_load("W", k, 1)
a("s_waitcnt vmcnt(%d)" % (2 * N1)); st(); a("s_barrier")
for k in range(N1, NPRE): g2_load("W", k, 0); g2_load("W", k, 1)
a("s_lshl_b32 s64, s8, 6"); a("s_lshr_b32 s3, s51, 5"); a("s_add_u32 s64, s64, s3")
a("s_lshl_b32 s65, s9, 6"); a("s_lshr_b32 s3, s50, 5"); a("s_add_u32 s65, s65, s3")
a("v_and_b32 v%d, 31, v%d" % (vfo, L)); a("v_lshlrev_b32 v%d, 2, v%d" % (vfo, vfo))
a("s_lshl_b32 s3, s64, 2"); a("s_add_u32 s3, s3, %d" % G_OFF)
a("buffer_load_dword v%d, v%d, s[12:15], s3 offen sc1" % (vgate, vfo)); vq.append("gate")
a("v_and_b32 v%d, 7, v%d" % (vfo, L)); a("v_lshlrev_b32 v%d, 7, v%d" % (vfo, vfo))
a("s_lshl_b32 s66, s8, 2"); a("s_add_u32 s66, s66, s5"); a("s_lshl_b32 s66, s66, 10"); a("s_add_u32 s66, s66, %d" % FH_OFF)
a("v_lshlrev_b32 v%d, 10, v%d" % (vpf, L)); a("s_lshl_b32 s3, s9, 7"); a("v_add_u32 v%d, s3, v%d" % (vpf, vpf))
a("v_mov_b32 v%d, 0x7fffffff" % vfl); a("v_cmp_gt_u32 vcc, 56, v%d" % L); a("v_cndmask_b32 v%d, v%d, v%d, vcc" % (vpf, vfl, vpf))
st(); a("s_barrier")
poll("Lp_h", [("buffer_load_dwordx2 %s, v%d, s[12:15], s66 offen sc1" % (rng(vfl, 2), vfo), vfl)])
vq = []
if opt("hpf", 1):
    a("buffer_load_dword v%d, v%d, s[12:15], s61 offen sc1" % (vfl, vpf)); vq.append("pf")
st()
needq = []
for k in range(28):
    needq += [("H", k, 0), ("H", k, 1)]
    if k >= NPRE: needq += [("W", k, 0), ("W", k, 1)]
KFLAG, KCHK = opt("kflag", 17), opt("kchk", 22)
reserve = 0
at_slots = None
def refill():
    while needq and len(free) > reserve and len(vq) < 60: g2_load(*needq.pop(0))
refill()
a("v_lshlrev_b32 v%d, 6, v%d" % (vfo, L))
a("s_lshl_b32 s67, s9, 1"); a("s_lshr_b32 s3, s8, 4"); a("s_add_u32 s67, s67, s3"); a("s_lshl_b32 s67, s67, 12"); a("s_add_u32 s67, s67, %d" % FA_OFF)
for k in range(28):
    tags = {("W", k, 0), ("W", k, 1), ("H", k, 0), ("H", k, 1)}
    g2_wait(tags)
    R_ = lambda t: rng(POOL0 + 4 * slot_of[t], 4)
    for lam in range(4):
        hb, wb = lam >> 1, lam & 1
        c = rng(ACC + 16 * lam, 16) if k else "0"
        a("v_mfma_f32_32x32x16_bf16 %s, %s, %s, %s" % (rng(ACC + 16 * lam, 16), R_(("W", k, wb)), R_(("H", k, hb)), c))
    for t in sorted(tags): free.append(slot_of[t])
    if k == KFLAG:
        a("buffer_load_dwordx2 %s, v%d, s[12:15], s67 offen sc1" % (rng(vfl, 2), vfo)); vq.append("aflag")
    refill()
    if k == KCHK:
        assert not needq
        g2_wait({"aflag"})
        tagcmp([vfl]); a("s_cbranch_scc1 Lp_a_ok")
        poll("Lp_a", [("buffer_load_dwordx2 %s, v%d, s[12:15], s67 offen sc1" % (rng(vfl, 2), vfo), vfl)])
        free.sort()
        at_slots = [free.pop(0) for _ in range(10)]
        A0, A1 = POOL0 + 4 * at_slots[0], POOL0 + 4 * at_slots[1]
        tt = POOL0 + 4 * at_slots[2]
        a("v_lshrrev_b32 v%d, 2, v%d" % (tt, L)); a("v_lshlrev_b32 v%d, 12, v%d" % (tt, tt)); a("v_and_b32 v%d, 3, v%d" % (tt + 1, L))
        a("v_lshl_add_u32 v%d, v%d, 4, v%d" % (tt, tt + 1, tt))
        a("s_lshl_b32 s62, s65, 12"); a("s_lshl_b32 s3, s64, 1"); a("s_add_u32 s62, s62, s3"); a("s_add_u32 s62, s62, %d" % AT_OFF); a("s_add_u32 s63, s62, 0x10000")
        a("buffer_load_dwordx4 %s, v%d, s[12:15], s62 offen sc1" % (rng(A0, 4), tt)); vq.append("a0")
        a("buffer_load_dwordx4 %s, v%d, s[12:15], s63 offen sc1" % (rng(A1, 4), tt)); vq.append("a1")
st()
A0, A1 = POOL0 + 4 * at_slots[0], POOL0 + 4 * at_slots[1]
tt = POOL0 + 4 * at_slots[2]; t2 = POOL0 + 4 * at_slots[3]
used = set(at_slots[:4])
clean = [s for s in range(NSLOT) if s not in used]
def cq(): return POOL0 + 4 * clean.pop(0)
P = [[cq() for q in range(4)] for s in range(3)]
AQ = [cq(), cq()]
GA = [cq() for q in range(4)]
ad = cq(); ad2 = cq()
a("v_lshlrev_b32 v%d, 4, v%d" % (vfl, L))
for lam in (1, 2, 3):
    a("s_xor_b32 s3, s5, %d" % lam); a("s_mul_i32 s3, s3, %d" % (3 * 4096)); a("s_add_u32 s3, s3, %d" % (GRED + (lam - 1) * 4096))
    a("v_add_u32 v%d, s3, v%d" % (ad + lam, vfl))
a("s_mul_i32 s3, s5, %d" % (3 * 4096)); a("s_add_u32 s3, s3, %d" % GRED); a("v_add_u32 v%d, s3, v%d" % (ad, vfl))
for lam in (1, 2, 3):
    for q in range(4): a("ds_write_b128 v%d, %s offset:%d" % (ad + lam, rng(ACC + 16 * lam + 4 * q, 4), 1024 * q))
a("s_lshl_b32 s3, s5, 11"); a("s_add_u32 s3, s3, %d" % ATS)
a("v_add_u32 v%d, s3, v%d" % (ad2, vfl))
a("v_bfe_u32 v%d, v%d, 2, 2" % (tt, L)); a("v_lshrrev_b32 v%d, 5, v%d" % (tt + 1, L)); a("v_lshl_add_u32 v%d, v%d, 2, v%d" % (tt, tt + 1, tt))
a("v_lshlrev_b32 v%d, 6, v%d" % (tt, tt)); a("v_bfe_u32 v%d, v%d, 4, 1" % (tt + 2, L)); a("v_lshl_add_u32 v%d, v%d, 5, v%d" % (tt, tt + 2, tt))
a("v_and_b32 v%d, 3, v%d" % (tt + 2, L)); a("v_lshl_add_u32 v%d, v%d, 3, v%d" % (tt, tt + 2, tt)); a("v_add_u32 v%d, s3, v%d" % (ad2 + 1, tt))
a("s_waitcnt vmcnt(0)")
a("ds_write_b128 v%d, %s" % (ad2, rng(A0, 4))); a("ds_write_b128 v%d, %s offset:1024" % (ad2, rng(A1, 4)))
for i2 in range(4): a("ds_read_b64_tr_b16 %s, v%d offset:%d" % (rng(AQ[i2 >> 1] + 2 * (i2 & 1), 2), ad2 + 1, 512 * i2))
a("v_and_b32 v%d, 31, v%d" % (tt, L)); a("v_lshlrev_b32 v%d, 10, v%d" % (tt, tt)); a("v_lshl_add_u32 v%d, v%d, 4, v%d" % (ad2 + 2, tt + 1, tt))
a("s_lshl_b32 s62, s64, 10"); a("s_lshl_b32 s3, s65, 1"); a("s_add_u32 s62, s62, s3")
srd(52, 44, 45, 0x200000)
omg = t2; g2 = t2 + 2
a("v_sub_f32 v%d, 1.0, v%d" % (omg, vgate)); a("v_cvt_pk_bf16_f32 v%d, 0, v%d" % (omg, omg)); a("v_mov_b32 v%d, v%d" % (omg + 1, omg))
a("v_mov_b32 v%d, v%d" % (g2, vgate)); a("v_mov_b32 v%d, v%d" % (g2 + 1, vgate))
a("s_waitcnt lgkmcnt(0)")
st()
a("s_barrier")
for q in range(4):
    for s in range(3): a("ds_read_b128 %s, v%d offset:%d" % (rng(P[s][q], 4), ad, s * 4096 + 1024 * q))
for q in range(4):
    src = AQ[q >> 1] + 2 * (q & 1)
    for h in range(2):
        a("v_lshlrev_b32 v%d, 16, v%d" % (GA[q] + 2 * h, src + h)); a("v_and_b32 v%d, 0xffff0000, v%d" % (GA[q] + 2 * h + 1, src + h))
    for h in range(2): a("v_pk_mul_f32 %s, %s, %s" % (rng(GA[q] + 2 * h, 2), rng(GA[q] + 2 * h, 2), rng(g2, 2)))
    for i in range(4): a("v_cvt_pk_bf16_f32 v%d, 0, v%d" % (GA[q] + i, GA[q] + i))
OUTQ = [P[0][0], P[0][2]]
for q in range(4):
    a("s_waitcnt lgkmcnt(%d)" % (9 - 3 * q))
    b = ACC + 4 * q
    for h in range(2):
        a("v_pk_add_f32 %s, %s, %s" % (rng(b + 2 * h, 2), rng(b + 2 * h, 2), rng(P[0][q] + 2 * h, 2)))
        a("v_pk_add_f32 %s, %s, %s" % (rng(P[1][q] + 2 * h, 2), rng(P[1][q] + 2 * h, 2), rng(P[2][q] + 2 * h, 2)))
    for h in range(2): a("v_pk_add_f32 %s, %s, %s" % (rng(b + 2 * h, 2), rng(b + 2 * h, 2), rng(P[1][q] + 2 * h, 2)))
    for i in range(4): a("v_cvt_pk_bf16_f32 v%d, 0, v%d" % (b + i, b + i))
    for h in range(2): a("v_pk_mul_f32 %s, %s, %s" % (rng(b + 2 * h, 2), rng(b + 2 * h, 2), rng(omg, 2)))
    for i in range(4): a("v_cvt_pk_bf16_f32 v%d, 0, v%d" % (b + i, b + i))
    for h in range(2): a("v_pk_add_f32 %s, %s, %s" % (rng(b + 2 * h, 2), rng(b + 2 * h, 2), rng(GA[q] + 2 * h, 2)))
    o = OUTQ[q >> 1] + 2 * (q & 1)
    for h in range(2): a("v_cvt_pk_bf16_f32 v%d, v%d, v%d" % (o + h, b + 2 * h, b + 2 * h + 1))
    if q & 1:
        o = OUTQ[q >> 1]
        a("v_permlane32_swap_b32 v%d, v%d" % (o, o + 2)); a("v_permlane32_swap_b32 v%d, v%d" % (o + 1, o + 3))
        a("buffer_store_dwordx4 %s, v%d, s[52:55], s62 offen offset:%d" % (rng(o, 4), ad2 + 2, 32 * (q >> 1)))
st()
if TS:
    a("s_waitcnt vmcnt(0)"); st()
if SPAN:
    a("s_and_b32 s3, s2, 7"); a("s_lshr_b32 s10, s2, 5"); a("s_cmp_eq_u32 s3, s10"); a("s_cbranch_scc0 Lspan_no")
    a("s_cmp_eq_u32 s4, 4"); a("s_cbranch_scc0 Lspan_no")
    a("s_waitcnt vmcnt(0)")
    a("s_memrealtime s[94:95]"); a("s_waitcnt lgkmcnt(0)")
    srd(56, 46, 47, 256)
    a("s_not_b32 s96, s96")
    a("v_mov_b32 v1, s94"); a("v_mov_b32 v2, s96"); a("v_mov_b32 v3, 0")
    a("s_mov_b64 exec, 1")
    a("buffer_atomic_umax v1, v3, s[56:59], 0 offen sc1")
    a("buffer_atomic_umax v2, v3, s[56:59], 0 offen offset:4 sc1")
    a("s_mov_b64 exec, -1")
    a.label("Lspan_no")
store_stamps(st.n)
a("s_endpgm")

a.label("Lrole_M")
st = Stamps()
va = VA(1)
T0, T1, T2, T3 = va.get(), va.get(), va.get(), va.get()
vxa = va.get(8); vwa = va.get(6); vl16 = va.get(); vtag = va.get(2, 2); vone = va.get(); vsel0 = va.get()
a("s_setprio %d" % opt("pm0", 3))
vfr = va.get(48, 4)
vacc = va.get(112, 4)
kv = VA(vfr)
pAre, pAim, pBre, pBim, pCre, pCim = [kv.get() for _ in range(6)]
for r in (pAre, pAim, pBre, pBim, pCre, pCim): a("v_mov_b32 v%d, 0" % r)
a("s_lshl_b32 s3, s2, 9"); a("s_lshl_b32 s10, s5, 7"); a("s_add_u32 s3, s3, s10")
a("v_lshl_add_u32 v%d, v%d, 1, s3" % (T0, L))
a("s_lshl_b32 s11, s2, 2")
a("s_waitcnt lgkmcnt(0)")
for r, s in ((pAre, 18), (pAim, 20), (pBre, 22), (pBim, 24), (pCre, 26), (pCim, 28)):
    a("global_load_short_d16_hi v%d, v%d, s[%d:%d]" % (r, T0, s, s + 1))
a("s_load_dword s50, s[30:31], s11")
a("s_load_dword s51, s[32:33], s11")
srd(12, 48, 49, 0x10000000)
epoch_load()
a("s_lshl_b32 s52, s6, 1"); a("s_lshr_b32 s3, s5, 1"); a("s_add_u32 s54, s52, s3")
a("s_and_b32 s55, s5, 1")
a("s_lshl_b32 s52, s54, 4"); a("s_add_u32 s52, s52, s7"); a("s_lshl_b32 s52, s52, 1"); a("s_add_u32 s52, s52, s55")
a("s_lshl_b32 s52, s52, 7"); a("s_add_u32 s52, s52, %d" % FH_OFF)
a("s_lshl_b32 s56, s2, 1"); a("s_lshr_b32 s3, s5, 1"); a("s_add_u32 s56, s56, s3")
a("s_lshr_b32 s53, s56, 6"); a("s_lshl_b32 s53, s53, 1"); a("s_add_u32 s53, s53, s55"); a("s_lshl_b32 s53, s53, 6")
a("s_and_b32 s3, s56, 63"); a("s_add_u32 s53, s53, s3"); a("s_lshl_b32 s53, s53, 6"); a("s_add_u32 s53, s53, %d" % FA_OFF)
a("v_cmp_eq_u32 vcc, 0, v%d" % L); a("v_mov_b32 v%d, 0x7fffffff" % T1); a("v_cndmask_b32 v%d, v%d, 0, vcc" % (vsel0, T1))
a("v_mov_b32 v%d, 1" % vone)
a("v_lshlrev_b32 v%d, 4, v%d" % (vl16, L))
a("s_lshl_b32 s3, s5, 12"); a("s_add_u32 s3, s3, %d" % XB[0])
a("v_and_b32 v%d, 31, v%d" % (T0, L)); a("v_lshrrev_b32 v%d, 5, v%d" % (T1, L))
a("v_bfe_u32 v%d, v%d, 1, 3" % (T2, L))
a("v_lshlrev_b32 v%d, 7, v%d" % (T0, T0))
a("s_xor_b32 s10, s5, 1"); a("s_lshl_b32 s10, s10, 12"); a("s_add_u32 s10, s10, %d" % XB[0])
for ks in range(4):
    a("v_add_u32 v%d, %d, v%d" % (T3, 2 * ks, T1)); a("v_xor_b32 v%d, v%d, v%d" % (T3, T3, T2))
    a("v_lshl_add_u32 v%d, v%d, 4, v%d" % (T3, T3, T0))
    a("v_add_u32 v%d, s3, v%d" % (vxa + ks, T3)); a("v_add_u32 v%d, s10, v%d" % (vxa + 4 + ks, T3))
a("v_bfe_u32 v%d, v%d, 2, 2" % (T0, L)); a("v_lshl_add_u32 v%d, v%d, 3, v%d" % (T0, T1, T0))
a("v_mul_u32_u24 v%d, 224, v%d" % (T0, T0))
a("v_and_b32 v%d, 3, v%d" % (T1, L)); a("v_lshl_add_u32 v%d, v%d, 3, v%d" % (T0, T1, T0))
a("v_bfe_u32 v%d, v%d, 4, 1" % (T1, L)); a("v_mul_u32_u24 v%d, %d, v%d" % (T1, UOFF, T1)); a("v_add_u32 v%d, v%d, v%d" % (T0, T0, T1))
a("s_lshl_b32 s10, s55, 7")
a("v_add_u32 v%d, s10, v%d" % (T1, T0))
for sl in range(3):
    a("v_add_u32 v%d, %d, v%d" % (vwa + 3 + sl, WB[sl] + 96, T0))
    a("v_add_u32 v%d, %d, v%d" % (vwa + sl, WB[sl], T1))
vkr = kv.get(); vkw = kv.get()
a("s_mul_i32 s57, s5, %d" % MS)
a("v_and_b32 v%d, 15, v%d" % (T0, L)); a("v_lshrrev_b32 v%d, 4, v%d" % (T1, L)); a("v_lshlrev_b32 v%d, 4, v%d" % (T1, T1)); a("v_add_u32 v%d, s57, v%d" % (T1, T1))
a("v_mul_u32_u24 v%d, 288, v%d" % (T2, T0)); a("v_add_u32 v%d, v%d, v%d" % (vkr, T2, T1))
a("v_lshl_add_u32 v%d, v%d, 6, v%d" % (vkw, T0, T1))
a("s_mov_b32 m0, s57")
st()
L2E = 1.4426950408889634
L2Eh = struct.unpack("<f", struct.pack("<f", L2E))[0]; L2El = L2E - L2Eh
vdt = kv.get(); va2 = kv.get(); vb2 = kv.get()
a("s_waitcnt lgkmcnt(0)")
epoch_fix()
a("v_mov_b32 v%d, s100" % vtag); a("v_mov_b32 v%d, s101" % (vtag + 1))
a("s_lshl_b32 s3, s50, 16"); a("s_and_b32 s10, s50, 0xffff0000"); a("s_cmp_lt_u32 s5, 2"); a("s_cselect_b32 s50, s3, s10")
a("s_lshl_b32 s3, s51, 16"); a("s_and_b32 s10, s51, 0xffff0000"); a("s_cmp_lt_u32 s5, 2"); a("s_cselect_b32 s58, s3, s10"); a("s_mov_b32 s59, s58")
a("s_mov_b32 s10, 0x%x" % f2u(L2Eh))
a("v_mov_b32 v%d, s50" % T0)
a("v_mul_f32 v%d, s10, v%d" % (T1, T0))
a("v_fma_f32 v%d, v%d, s10, -v%d" % (T2, T0, T1))
a("v_mul_f32 v%d, 0x%x, v%d" % (T3, f2u(L2El), T0)); a("v_add_f32 v%d, v%d, v%d" % (T2, T2, T3))
a("v_exp_f32 v%d, v%d" % (T1, T1))
a("v_mul_f32 v%d, 0x%x, v%d" % (T2, f2u(0.6931471805599453), T2))
a("v_fma_f32 v%d, v%d, v%d, v%d" % (T1, T1, T2, T1))
a("v_cvt_pk_bf16_f32 v%d, 0, v%d" % (vdt, T1))
a("s_waitcnt vmcnt(0)")
st()
a("v_mul_f32 v%d, v%d, v%d" % (va2, vdt, pAre)); a("v_mul_f32 v%d, v%d, v%d" % (vb2, vdt, pAim))
a("v_mul_f32 v%d, s10, v%d" % (va2, va2)); a("v_mul_f32 v%d, 0.15915494, v%d" % (vb2, vb2))
def cpx(): return kv.get(2, 2)
Z = {}
tm = kv.get(9)
for n, m in enumerate((8, 1, 128)):
    Z[m] = cpx(); t = tm + 3 * n
    if m == 1:
        a("v_exp_f32 v%d, v%d" % (t, va2)); a("v_fract_f32 v%d, v%d" % (t + 1, vb2))
    else:
        a("v_mul_f32 v%d, 0x%x, v%d" % (t, f2u(float(m)), va2)); a("v_mul_f32 v%d, 0x%x, v%d" % (t + 1, f2u(float(m)), vb2))
        a("v_exp_f32 v%d, v%d" % (t, t)); a("v_fract_f32 v%d, v%d" % (t + 1, t + 1))
for n, m in enumerate((8, 1, 128)):
    t = tm + 3 * n
    a("v_sin_f32 v%d, v%d" % (t + 2, t + 1)); a("v_cos_f32 v%d, v%d" % (t + 1, t + 1))
Y = [cpx(), cpx()]
a("v_mul_f32 v%d, v%d, v%d" % (pBre, vdt, pBre)); a("v_mul_f32 v%d, v%d, v%d" % (pBim, vdt, pBim))
a("v_mul_f32 v%d, v%d, v%d" % (Y[0], pCre, pBre)); a("v_mul_f32 v%d, v%d, v%d" % (Y[0] + 1, pCre, pBim))
a("v_fma_f32 v%d, -v%d, v%d, v%d" % (Y[0], pCim, pBim, Y[0])); a("v_fma_f32 v%d, -v%d, v%d, -v%d" % (Y[0] + 1, pCim, pBre, Y[0] + 1))
for n, m in enumerate((8, 1, 128)):
    t = tm + 3 * n
    a("v_mul_f32 v%d, v%d, v%d" % (Z[m], t, t + 1))
    a("v_mul_f32 v%d, %sv%d, v%d" % (Z[m] + 1, "-" if m == 8 else "", t, t + 2))
def cmul(d, x, y):
    return ["v_pk_mul_f32 %s, %s, %s op_sel_hi:[0,1]" % (rng(d, 2), rng(x, 2), rng(y, 2)),
            "v_pk_fma_f32 %s, %s, %s, %s op_sel:[1,1,0] op_sel_hi:[1,0,1] neg_lo:[1,0,0]" % (rng(d, 2), rng(x, 2), rng(y, 2), rng(d, 2))]
pk = kv.get(4); pkn = [0]
def put(row, src):
    p = pk + pkn[0] % 4; pkn[0] += 1
    if src is None: return ["v_mov_b32 v%d, 0x3f80" % p, "ds_write_addtid_b32 v%d offset:%d" % (p, 288 * row)]
    return ["v_cvt_pk_bf16_f32 v%d, v%d, v%d" % (p, src, src + 1), "ds_write_addtid_b32 v%d offset:%d" % (p, 288 * row)]
E = {1: Z[1]};
for e in range(2, 8): E[e] = cpx()
H = {1: Z[128]}
for h in range(2, 8): H[h] = cpx()
YF = kv.get(16, 4); XF = kv.get(16, 4); KD = kv.get(12, 4); TM = [cpx(), cpx()]
s1 = []
for j in range(16):
    if j < 15: s1 += cmul(Y[(j + 1) & 1], Y[j & 1], Z[8])
    s1 += put(j, Y[j & 1])
s2 = []
for e in range(2, 8): s2 += cmul(E[e], E[e - 1], Z[1]) + cmul(H[e], H[e - 1], Z[128])
while s1 or s2:
    for _ in range(5):
        if s1: a(s1.pop(0))
    for _ in range(2):
        if s2: a(s2.pop(0))
def frag_reads(dst):
    for ks in range(4): a("ds_read_b128 %s, v%d offset:%d" % (rng(dst + 4 * ks, 4), vkr, 64 * ks))
def tile_mfma(t):
    a("s_waitcnt lgkmcnt(0)")
    for ks in range(4):
        a("v_mfma_f32_16x16x32_bf16 %s, %s, %s, %s" % (rng(KD + 4 * t, 4), rng(YF + 4 * ks, 4), rng(XF + 4 * ks, 4), rng(KD + 4 * t, 4) if ks else "0"))
frag_reads(YF)
seq = put(0, None)
for e in range(1, 8): seq += put(e, E[e])
seq += put(8, H[1])
for e in range(1, 8): seq += cmul(TM[e & 1], H[1], E[e]) + put(8 + e, TM[e & 1])
for x in seq: a(x)
frag_reads(XF)
seq = []; n = 0
for h in (2, 3):
    seq += put(4 * (h - 2), H[h])
    for e in (2, 4, 6):
        seq += cmul(TM[n & 1], H[h], E[e]) + put(4 * (h - 2) + e // 2, TM[n & 1]); n += 1
for h in (4, 5, 6, 7):
    seq += put(8 + 2 * (h - 4), H[h]) + cmul(TM[n & 1], H[h], E[4]) + put(9 + 2 * (h - 4), TM[n & 1]); n += 1
for x in seq: a(x)
tile_mfma(0)
frag_reads(XF)
prev = H[7]
for h in range(8, 17):
    d = TM[h & 1]
    for x in cmul(d, prev, Z[128]) + put(h - 8, d): a(x)
    prev = d
tile_mfma(1)
frag_reads(XF)
tile_mfma(2)
for t in range(3): a("ds_write_b128 v%d, %s offset:%d" % (vkw, rng(KD + 4 * t, 4), 1024 * t))
assert kv.n <= 256
def reads(q):
    stg = q // 4; ks = q % 4; slot = stg % 3; fs = vfr + 24 * (q & 1)
    X0, X1 = fs, fs + 4
    W = [fs + 8 + 4 * i for i in range(4)]
    r = []
    def wr(i):
        base = vwa + slot if i < 3 else vwa + 3 + slot
        off = ks * 16 * 224 + (32 * i if i < 3 else 0)
        return [("ds_read_b64_tr_b16 %s, v%d offset:%d" % (rng(W[i], 2), base, off), W[i]),
                ("ds_read_b64_tr_b16 %s, v%d offset:%d" % (rng(W[i] + 2, 2), base, off + 4 * 224), W[i])]
    r.append(("ds_read_b128 %s, v%d offset:%d" % (rng(X0, 4), vxa + ks, slot * XS), X0))
    r += wr(0)
    r.append(("ds_read_b128 %s, v%d offset:%d" % (rng(X1, 4), vxa + 4 + ks, slot * XS), X1))
    r += wr(1) + wr(2) + wr(3)
    return r
def mfmas(q):
    fs = vfr + 24 * (q & 1); X0, X1 = fs, fs + 4
    W = [fs + 8 + 4 * i for i in range(4)]
    order = [(0, X0, W[0]), (1, X1, W[0]), (2, X0, W[1]), (3, X1, W[1]), (4, X0, W[2]), (5, X1, W[2]), (6, X0, W[3])]
    return [("v_mfma_f32_32x32x16_bf16 %s, %s, %s, %s" % (rng(vacc + 16 * t, 16), rng(w, 4), rng(x, 4), rng(vacc + 16 * t, 16) if q else "0"), (x, w)) for t, x, w in order]
a("s_setprio %d" % opt("pm1", 2))
a("s_waitcnt vmcnt(0) lgkmcnt(0)")
st()
a("s_barrier")
st()
if TS: a("s_waitcnt lgkmcnt(0)")
a(".p2align 3")
pend = []
def issue_read(rd): a(rd[0]); pend.append(rd[1])
def need_l(regs):
    global pend
    last = -1
    for i, d in enumerate(pend):
        if d in regs: last = i
    if last >= 0:
        n = len(pend) - 1 - last
        a("s_waitcnt lgkmcnt(%d)" % min(n, 15))
        pend = pend[last + 1:] if n <= 15 else pend[len(pend) - 15:]
for rd in reads(0): issue_read(rd)
for q in range(32):
    ms = mfmas(q)
    nxt = reads(q + 1) if q + 1 < 32 else []
    los = (q % 4 == 3) and (q + 1 < 32)
    for mi, (txt, regs) in enumerate(ms):
        if los and mi == 0:
            a("s_waitcnt lgkmcnt(0)"); pend = []
        elif mi in (0, 2, 4):
            rs = set()
            for k in range(mi, mi + 2 if mi < 4 else 7): rs |= set(ms[k][1])
            need_l(rs)
        a(txt)
        if los and mi == 0:
            a("s_barrier")
            if q // 4 in (1, 4): st()
        for _ in range(2):
            if nxt: issue_read(nxt.pop(0))
st()
a("s_mul_i32 s60, s54, %d" % PANEL); a("s_mul_i32 s3, s7, %d" % (7 * 2048)); a("s_add_u32 s60, s60, s3")
a("s_lshl_b32 s3, s55, 10"); a("s_add_u32 s60, s60, s3")
a("s_add_u32 s64, s60, %d" % (3 * 2048))
a("s_lshl_b32 s3, s55, 13"); a("s_add_u32 s60, s60, s3")
a("s_xor_b32 s61, s60, 0x400"); a("s_add_u32 s62, s60, 4096"); a("s_add_u32 s63, s61, 4096")
for t in range(7):
    b = vacc + 16 * t
    for i in range(16): a("v_cvt_pk_bf16_f32 v%d, 0, v%d" % (b + i, b + i))
    for i in range(0, 8, 2): a("v_pk_mul_f32 %s, %s, %s" % (rng(b + i, 2), rng(b + i, 2), rng(b + 8 + i, 2)))
    for i in range(4): a("v_cvt_pk_bf16_f32 v%d, v%d, v%d" % (b + 8 + i, b + 2 * i, b + 2 * i + 1))
    so = "s64" if t == 6 else "s%d" % (60 + (t & 1) + (2 if t >= 4 else 0))
    off = 2048 if t in (2, 3) else 0
    a("buffer_store_dwordx4 %s, v%d, s[12:15], %s offen offset:%d sc1" % (rng(b + 8, 4), vl16, so, off))
st()
cv = VA(vxa)
vA = cv.get(); vB = cv.get(); vrd = cv.get(); vrw = cv.get(); vuu = cv.get(); vsy = cv.get()
assert cv.n <= vl16
CA = [vfr, 184]
CB = [vacc, vacc + 32]
CB = [vacc + 0, vacc + 32]; CACC = 216;
CX = vacc + 64
assert vfr + 32 <= vacc and 184 + 32 <= CACC and CACC + 32 <= 256 and vacc + 112 <= 184
a("s_lshr_b32 s10, s5, 1")
a("s_mul_i32 s3, s10, %d" % RCH); a("s_lshl_b32 s11, s55, 8"); a("s_add_u32 s3, s3, s11"); a("s_add_u32 s3, s3, %d" % (RB + 3968 - 512 * 7))
a("v_and_b32 v%d, 3, v%d" % (T0, L)); a("v_mul_u32_u24 v%d, %d, v%d" % (T0, RCS, T0))
a("v_bfe_u32 v%d, v%d, 2, 2" % (T1, L)); a("v_lshlrev_b32 v%d, 7, v%d" % (T1, T1)); a("v_sub_u32 v%d, v%d, v%d" % (T0, T0, T1))
a("v_lshrrev_b32 v%d, 4, v%d" % (T1, L)); a("v_lshlrev_b32 v%d, 4, v%d" % (T1, T1))
a("v_add3_u32 v%d, v%d, v%d, s3" % (vA, T0, T1))
a("s_mul_i32 s65, s10, %d" % US); a("s_add_u32 s65, s65, %d" % AUX)
a("s_add_u32 s3, s65, s11"); a("s_add_u32 s3, s3, 8")
a("v_and_b32 v%d, 15, v%d" % (T0, L)); a("v_lshlrev_b32 v%d, 3, v%d" % (T0, T0))
a("v_add3_u32 v%d, v%d, v%d, s3" % (vB, T0, T1))
a("s_lshl_b32 s3, s5, 12"); a("s_add_u32 s3, s3, %d" % CRED); a("v_add_u32 v%d, s3, v%d" % (vrw, vl16))
a("s_xor_b32 s3, s5, 1"); a("s_lshl_b32 s3, s3, 12"); a("s_add_u32 s3, s3, %d" % CRED); a("v_add_u32 v%d, s3, v%d" % (vrd, vl16))
a("s_lshl_b32 s3, s55, 11"); a("s_add_u32 s3, s3, s65"); a("s_add_u32 s3, s3, 128")
a("v_lshl_add_u32 v%d, v%d, 3, s3" % (vuu, L))
a("s_barrier")
st()
if TS: a("s_waitcnt lgkmcnt(0)")
def creads(s):
    A = CA[s & 1]; B = CB[s & 1]; r = []
    for i in range(8):
        r.append(("ds_read_b128 %s, v%d offset:%d" % (rng(A + 4 * i, 4), vA, 512 * (7 - i) + 64 * s), A + 4 * i))
        r.append(("ds_read_b64 %s, v%d offset:%d" % (rng(B + 4 * i, 2), vB, 512 * i + 64 * s), B + 4 * i))
        r.append(("ds_read_b64 %s, v%d offset:%d" % (rng(B + 4 * i + 2, 2), vB, 512 * i + 64 * s + 8), B + 4 * i))
    return r
pend = []
for rd in creads(0): issue_read(rd)
seen = set()
HFLAG_AT = opt("hflag", 30)
cnt = 0
for s in range(4):
    A = CA[s & 1]; B = CB[s & 1]
    nxt = creads(s + 1) if s < 3 else []
    pairs = sorted([(v, w) for v in range(8) for w in range(8) if v + w <= 7], key=lambda p: (max(p), p))
    lastmax = -1
    for (v, w) in pairs:
        if max(v, w) != lastmax:
            lastmax = max(v, w); need_l({A + 4 * lastmax, B + 4 * lastmax})
        j = v + w
        c = rng(CACC + 4 * j, 4) if j in seen else "0"; seen.add(j)
        a("v_mfma_f32_16x16x32_bf16 %s, %s, %s, %s" % (rng(CACC + 4 * j, 4), rng(A + 4 * v, 4), rng(B + 4 * w, 4), c))
        if nxt and lastmax >= 2: issue_read(nxt.pop(0))
        cnt += 1
        if cnt == HFLAG_AT:
            a("s_waitcnt vmcnt(0)")
            a("buffer_store_dwordx2 %s, v%d, s[12:15], s52 offen sc1" % (rng(vtag, 2), vsel0))
            st()
    assert not nxt
st()
UQ = CX; PQ = CX + 8; UF = CX + 24
for t in range(4): a("ds_read_b64 %s, v%d offset:%d" % (rng(UQ + 2 * t, 2), vuu, 512 * t))
a("s_nop 7")
a("s_cmp_eq_u32 s55, 0"); a("s_cbranch_scc1 Lcv_noswap")
for i in range(16): a("v_swap_b32 v%d, v%d" % (CACC + i, CACC + 16 + i))
a.label("Lcv_noswap")
for t in range(4): a("ds_write_b128 v%d, %s offset:%d" % (vrw, rng(CACC + 16 + 4 * t, 4), 1024 * t))
a("s_lshl_b32 s3, s5, 2"); a("s_add_u32 s3, s3, %d" % (MISC + 16)); a("v_mov_b32 v%d, s3" % T0)
a("ds_write_b32 v%d, v%d" % (T0, vone))
a("s_xor_b32 s3, s3, 4"); a("v_mov_b32 v%d, s3" % vsy)
a("s_waitcnt lgkmcnt(5)")
for t in range(4):
    for h in range(2):
        a("v_lshlrev_b32 v%d, 16, v%d" % (UF + 4 * t + 2 * h, UQ + 2 * t + h)); a("v_and_b32 v%d, 0xffff0000, v%d" % (UF + 4 * t + 2 * h + 1, UQ + 2 * t + h))
    for h in range(2): a("v_pk_mul_f32 %s, %s, s[58:59]" % (rng(UF + 4 * t + 2 * h, 2), rng(UF + 4 * t + 2 * h, 2)))
    for i in range(4): a("v_cvt_pk_bf16_f32 v%d, 0, v%d" % (UF + 4 * t + i, UF + 4 * t + i))
a("s_mov_b32 s10, 0")
a.label("Lcv_wait")
a("ds_read_b32 v%d, v%d" % (T1, vsy)); a("s_waitcnt lgkmcnt(0)")
a("v_readfirstlane_b32 s3, v%d" % T1); a("s_add_u32 s10, s10, 1")
a("s_cmp_eq_u32 s3, 1"); a("s_cbranch_scc1 Lcv_go")
a("s_cmp_lt_u32 s10, %d" % (SPIN * 10)); a("s_cbranch_scc1 Lcv_wait")
a.label("Lcv_go")
for t in range(4): a("ds_read_b128 %s, v%d offset:%d" % (rng(PQ + 4 * t, 4), vrd, 1024 * t))
a("s_lshl_b32 s60, s56, 12"); a("s_lshl_b32 s3, s55, 11"); a("s_add_u32 s60, s60, s3"); a("s_add_u32 s60, s60, %d" % AT_OFF)
a("v_lshlrev_b32 v%d, 3, v%d" % (T2, L))
for t in range(4):
    a("s_waitcnt lgkmcnt(%d)" % (3 - t))
    b = CACC + 4 * t
    for h in range(2): a("v_pk_add_f32 %s, %s, %s" % (rng(b + 2 * h, 2), rng(b + 2 * h, 2), rng(PQ + 4 * t + 2 * h, 2)))
    for i in range(4): a("v_cvt_pk_bf16_f32 v%d, 0, v%d" % (b + i, b + i))
    for h in range(2): a("v_pk_add_f32 %s, %s, %s" % (rng(b + 2 * h, 2), rng(b + 2 * h, 2), rng(UF + 4 * t + 2 * h, 2)))
    for h in range(2): a("v_cvt_pk_bf16_f32 v%d, v%d, v%d" % (UQ + 2 * t + h, b + 2 * h, b + 2 * h + 1))
    a("buffer_store_dwordx2 %s, v%d, s[12:15], s60 offen offset:%d sc1" % (rng(UQ + 2 * t, 2), T2, 512 * t))
st()
a("s_waitcnt vmcnt(0)")
a("buffer_store_dwordx2 %s, v%d, s[12:15], s53 offen sc1" % (rng(vtag, 2), vsel0))
st()
a("s_or_b32 s3, s2, s4"); a("s_cmp_eq_u32 s3, 0"); a("s_cbranch_scc0 Lm_done")
a("s_mov_b32 s60, %d" % FU_OFF)
lds_ = []
for i in range(4):
    lds_.append(("buffer_load_dwordx4 %s, v%d, s[12:15], s60 offen offset:%d sc1" % (rng(CX + 4 * i, 4), vl16, 1024 * i), CX + 4 * i))
    lds_.append(("s_nop 0", CX + 4 * i + 2))
poll("Lp_ep", lds_)
a("s_mov_b32 s60, %d" % EP_OFF)
a("buffer_store_dwordx2 %s, v%d, s[12:15], s60 offen sc1" % (rng(vtag, 2), vsel0))
a.label("Lm_done")
if DBG:
    a("s_mul_i32 s3, s5, 9280"); a("s_add_u32 s10, s3, %d" % RB); a("v_add_u32 v%d, s10, v%d" % (T0, vl16))
    a("s_mul_i32 s11, s2, %d" % (2 * RCH)); a("s_add_u32 s11, s11, s3"); a("s_add_u32 s11, s11, %d" % DBG_OFF)
    for i in range(10):
        a("ds_read_b128 %s, v%d offset:%d" % (rng(CX, 4), T0, 1024 * i)); a("s_waitcnt lgkmcnt(0)")
        if i == 9:
            a("s_mov_b64 exec, 0xf")
        a("buffer_store_dwordx4 %s, v%d, s[12:15], s11 offen" % (rng(CX, 4), vl16)); a("s_add_u32 s11, s11, 1024"); a("s_waitcnt vmcnt(0)")
    a("s_mov_b64 exec, -1")
store_stamps(st.n)
a.label("Lend")
a("s_endpgm")
def rbf_int(l):
    u = np.array([l], np.float32).view(np.uint32)[0]
    r = ((int(u) + 0x7FFF + ((int(u) >> 16) & 1)) >> 16) << 16
    return int(np.array([r], np.uint32).view(np.float32)[0])
def taddr(l):
    if l < 0: return 3072
    lp = rbf_int(l)
    s = 0 if lp < 256 else 1 if lp < 512 else 2 if lp < 1024 else 3
    y = ((lp >> 7) << 3) | (lp & 7)
    row = 8 * s + (y >> s); j = (lp >> 3) & 15
    return row * 64 + j * 4
for r in range(4):
    for lane in range(64):
        for z in range(-3, 8):
            gr, gz = GZ[vidx(r, z)]
            assert gr == r and taddr(8 * (64 * r + lane) + z) == taddr(8 * (64 * r + lane) + gz), (r, lane, z)
body, added = hazard.fix(a.lines, verbose=bool(opt("vh")))
txt = "\n".join(body) + "\n.p2align 4\n.type Ltable,@object\nLtable:\n"
for blk in range(3):
    for lane in range(64):
        w = []
        for k in range(4):
            i = 2 * (4 * blk + k)
            (r0, z0), (r1, z1) = GZ[i], GZ[i + 1]
            w.append(taddr(8 * (64 * r0 + lane) + z0) | (taddr(8 * (64 * r1 + lane) + z1) << 16))
        txt += ".long " + ", ".join("0x%08x" % x for x in w) + "\n"
txt += "Ltable_end:\n.size Ltable, 3072\n"
print("hazard nops added:", added, file=sys.stderr)
open(outf, "w").write(single(txt, grid=256, block=512, vgpr=256, accum=256, lds=LDS_BYTES))
```
